```python
import torch

def _softmax(x, axis=-1):
    return torch.softmax(x, dim=axis)
def _gelu(x):
    return torch.nn.functional.gelu(x, approximate="tanh")
def _silu(x):
    return torch.nn.functional.silu(x)
def _sigmoid(x):
    return torch.sigmoid(x)
def _layernorm(x, axis=-1, eps=1e-5):
    m = x.mean(dim=axis, keepdim=True)
    v = x.var(dim=axis, keepdim=True, unbiased=False)
    return (x - m) / torch.sqrt(v + eps)
def _scatter_add(tgt, idx, src, axis=0):
    return tgt.clone().index_add_(axis, idx, src)
def _segment_sum(src, seg, n):
    out = torch.zeros((n,) + src.shape[1:], dtype=src.dtype)
    return out.index_add_(0, seg, src)
def _pad(x, pw):
    flat = tuple(v for pair in reversed(pw) for v in pair)
    return torch.nn.functional.pad(x, flat)

kernel_name = 'standalone__gqa_softmax__near_ridge'

def setup_inputs():

    _w = (lambda a: (lambda t: t.to(torch.bfloat16) if t.is_floating_point() else t)(torch.as_tensor(a)))
    B, Hq, Hkv, Sq, Sk, D = 16, 32, 32, 512, 512, 192
    return {
        "q": _w((lambda *s: torch.randn(*s, dtype=torch.bfloat16) * 0.8)(B, Hq, Sq, D)),
        "k": _w((lambda *s: torch.randn(*s, dtype=torch.bfloat16) * 0.8)(B, Hkv, Sk, D)),
        "v": _w((lambda *s: torch.randn(*s, dtype=torch.bfloat16) * 0.05)(B, Hkv, Sk, D)),
    }

def reference(q, k, v):
    B, Hq, Sq, D = q.shape
    Hkv = k.shape[1]
    rep = Hq // Hkv
    k = (lambda x, n, axis: torch.repeat_interleave(x, n, dim=axis))(k, rep, axis=1)
    v = (lambda x, n, axis: torch.repeat_interleave(x, n, dim=axis))(v, rep, axis=1)
    scale = D ** -0.5
    scores = torch.einsum("bhqd,bhkd->bhqk", q, k) * scale
    p = _softmax(scores, axis=-1)
    return torch.einsum("bhqk,bhkd->bhqd", p, v)
```

```python
import re
REG=re.compile(r'(?<![\w.])([vas])(?:(\d+)|\[(\d+):(\d+)\])(?![\w])')
def regs_of(tok):
    out=[]
    tok=tok.strip()
    for m in REG.finditer(tok):
        f=m.group(1)
        if m.group(2) is not None: out.append(f+m.group(2))
        else: out+= [f+str(i) for i in range(int(m.group(3)),int(m.group(4))+1)]
    if re.search(r'\bvcc\b',tok): out.append('vcc')
    if re.search(r'\bm0\b',tok): out.append('m0')
    if re.search(r'\bexec\b',tok): out.append('exec')
    return out
TRANS=('v_exp_f32','v_log_f32','v_rcp_f32','v_rsq_f32','v_sqrt_f32')
class Ins:
    __slots__=('text','kind','rd','wr','meta','pre_lgkm','pre_vm','pre_nop','mn','passes','srcC','cost')
    def __init__(s,text,meta=None,cost=None):
        s.text=text; s.meta=meta; s.pre_lgkm=None; s.pre_vm=None; s.pre_nop=0; s.passes=0; s.srcC=[]
        t=text.split(';')[0].strip()
        s.rd=[]; s.wr=[]
        if t.endswith(':') or t=='' or t.startswith('.'):
            s.kind='label'; s.mn=''; s.cost=0; return
        p=t.split(None,1); mn=p[0]; s.mn=mn
        ops=[o.strip() for o in p[1].split(',')] if len(p)>1 else []
        R=lambda o: regs_of(o)
        if mn=='NEED': s.kind='need'; s.cost=4; return
        if mn.startswith('v_mfma'):
            s.kind='mfma'; s.wr=R(ops[0]); s.rd=R(ops[1])+R(ops[2])+R(ops[3]); s.srcC=R(ops[3])
            s.passes=8 if '32x32x16' in mn else 4
        elif mn.startswith('v_cmp'):
            s.kind='valu'; s.wr=R(ops[0]); s.rd=sum((R(o) for o in ops[1:]),[])
        elif mn.startswith('v_permlane') and 'swap' in mn:
            s.kind='valu'; s.wr=R(ops[0])+R(ops[1]); s.rd=list(s.wr)
        elif mn.startswith('v_'):
            s.kind='trans' if mn in TRANS else 'valu'
            s.wr=R(ops[0]); s.rd=sum((R(o) for o in ops[1:]),[])
            if mn.startswith(('v_fmac','v_dot2c')): s.rd+=s.wr
            if mn.startswith('v_cndmask') and len(ops)==3: s.rd.append('vcc')
        elif mn.startswith('ds_read'):
            s.kind='dsr'; s.wr=R(ops[0]); s.rd=R(ops[1])
        elif mn.startswith('ds_write'):
            s.kind='dsw'; s.rd=R(ops[0])+R(ops[1])
        elif mn.startswith('buffer_load'):
            if re.search(r'\blds\b',t):
                s.kind='dma'; s.rd=sum((R(o) for o in ops),[])+['m0']
            else:
                s.kind='vld'; s.wr=R(ops[0]); s.rd=sum((R(o) for o in ops[1:]),[])
        elif mn.startswith('buffer_store'):
            s.kind='vst'; s.rd=sum((R(o) for o in ops),[])
        elif mn=='s_barrier': s.kind='bar'
        elif mn=='s_waitcnt': s.kind='wait'
        elif mn=='s_nop': s.kind='nop'
        elif mn.startswith(('s_cbranch','s_branch','s_call','s_setpc','s_endpgm')):
            s.kind='br'
            if 'vcc' in mn: s.rd=['vcc']
            if 'scc' in mn: s.rd=['scc']
        elif mn.startswith('s_cmp'):
            s.kind='salu'; s.rd=sum((R(o) for o in ops),[]); s.wr=['scc']
        elif mn.startswith(('s_load','s_memtime','s_memrealtime')):
            s.kind='smem'; s.wr=R(ops[0]); s.rd=sum((R(o) for o in ops[1:]),[])
        elif mn.startswith('s_'):
            s.kind='salu'; s.wr=R(ops[0]); s.rd=sum((R(o) for o in ops[1:]),[])
            if mn.startswith(('s_cselect','s_addc','s_subb')): s.rd.append('scc')
            if not mn.startswith(('s_mov','s_cselect','s_mul_i32','s_setprio','s_sleep')): s.wr.append('scc')
        else:
            raise ValueError('unknown instr '+t)
        if cost is not None: s.cost=cost
        else:
            s.cost={'trans':8,'mfma':8,'label':0}.get(s.kind,4)
    def __repr__(s): return s.text
def I(text,meta=None,cost=None): return Ins(text,meta,cost)

def insert_waits(trace_fn, maxit=6):
    for it in range(maxit):
        changed=False
        dsq=[]
        vmq=[]
        for ins,ctx in trace_fn():
            k=ins.kind
            if k=='label': continue
            if ins.pre_lgkm is not None:
                n=ins.pre_lgkm
                if len(dsq)>n: del dsq[:len(dsq)-n]
            if ins.pre_vm is not None:
                n=ins.pre_vm
                if len(vmq)>n: del vmq[:len(vmq)-n]
            if k=='wait':
                m=re.search(r'lgkmcnt\((\d+)\)',ins.text)
                if m:
                    n=int(m.group(1))
                    if len(dsq)>n: del dsq[:len(dsq)-n]
                m=re.search(r'vmcnt\((\d+)\)',ins.text)
                if m:
                    n=int(m.group(1))
                    if len(vmq)>n: del vmq[:len(vmq)-n]
                continue
            if k=='need':
                tiles=set(ctx+p for p in ins.meta['tiles'])
                last=-1
                for i,tg in enumerate(vmq):
                    if tg in tiles: last=i
                if last>=0:
                    n=min(63,len(vmq)-1-last)
                    if ins.pre_vm is None or n<ins.pre_vm:
                        ins.pre_vm=n; changed=True
                    del vmq[:len(vmq)-min(len(vmq),ins.pre_vm)]
                if ins.meta.get('lgkm0'):
                    if dsq:
                        if ins.pre_lgkm!=0: ins.pre_lgkm=0; changed=True
                        dsq.clear()
                continue
            touched=set(ins.rd)|set(ins.wr)
            extra=ins.meta.get('also') if isinstance(ins.meta,dict) else None
            if extra: touched|=set(extra)
            last=-1
            for i,d in enumerate(dsq):
                if d & touched: last=i
            if last>=0:
                n=min(15,len(dsq)-1-last)
                if ins.pre_lgkm is None or n<ins.pre_lgkm:
                    ins.pre_lgkm=n; changed=True
                n=ins.pre_lgkm
                del dsq[:len(dsq)-min(n,len(dsq))]
            lastv=-1
            for i,tg in enumerate(vmq):
                if isinstance(tg,frozenset) and (tg & touched): lastv=i
            if lastv>=0:
                n=min(63,len(vmq)-1-lastv)
                if ins.pre_vm is None or n<ins.pre_vm:
                    ins.pre_vm=n; changed=True
                del vmq[:len(vmq)-min(len(vmq),ins.pre_vm)]
            if k=='dsr': dsq.append(set(ins.wr))
            elif k=='dsw': dsq.append(set())
            elif k=='dma': vmq.append(ctx+ins.meta['pos'])
            elif k=='vst': vmq.append(None)
            elif k=='vld': vmq.append(frozenset(ins.wr))
        if not changed: return
    raise RuntimeError('waits did not converge')

def materialize(ins):
    out=[]
    if ins.pre_nop:
        n=ins.pre_nop
        while n>0:
            c=min(n,16); out.append(f's_nop {c-1}'); n-=c
    w=[]
    if ins.pre_vm is not None: w.append(f'vmcnt({ins.pre_vm})')
    if ins.pre_lgkm is not None: w.append(f'lgkmcnt({ins.pre_lgkm})')
    if w: out.append('s_waitcnt '+' '.join(w))
    if ins.kind!='need': out.append(ins.text)
    return out

def states_of_pre(ins):
    n=ins.pre_nop
    if ins.pre_vm is not None or ins.pre_lgkm is not None: n+=1
    return n

def check_hazards(trace_fn, fix=True, verbose=True):
    total_fixed=0
    for it in range(8):
        hist=[]
        pos=0; fixed=0
        for ins,ctx in trace_fn():
            if ins.kind=='label': continue
            pos+=states_of_pre(ins)
            if ins.kind=='need': continue
            need=0; why=''
            k=ins.kind; rd=set(ins.rd); wr=set(ins.wr)
            isvalu=k in('valu','trans')
            for (p,ppos) in reversed(hist):
                d=pos-ppos-1
                if d>=20: break
                req=0
                pw=set(p.wr); pk=p.kind
                if pk in('valu','trans'):
                    vw={r for r in pw if r[0] in 'va' and r!='vcc'}
                    sw=pw-vw
                    if k=='mfma' and vw&rd: req=max(req,2)
                    if ins.mn.startswith('v_permlane') and vw&rd: req=max(req,2)
                    if ins.mn.startswith(('v_readfirstlane','v_readlane')) and vw&rd: req=max(req,1)
                    if pk=='trans' and k=='valu' and vw&rd: req=max(req,1)
                    if isvalu and sw&rd: req=max(req,2)
                    if k in('dma','vst','vld') and sw&rd: req=max(req,5)
                if pk=='mfma':
                    lat={8:12,4:8}[p.passes]; ov={8:10,4:6}[p.passes]; war={8:7,4:3}[p.passes]
                    if k=='mfma':
                        ab=rd-set(ins.srcC) if set(ins.srcC) else rd
                        t=ins.text.split(None,1)[1].split(',')
                        ab=set(regs_of(t[1])+regs_of(t[2]))
                        if pw&ab: req=max(req,lat)
                        c=set(ins.srcC)
                        if pw&c and not (pw==c and p.passes==ins.passes): req=max(req,ov)
                        if pw&wr and not (pw==wr and p.passes==ins.passes): req=max(req,ov)
                    elif isvalu or k in('dsr','dsw','dma','vst','vld'):
                        if pw&(rd|wr): req=max(req,lat)
                        if isvalu and set(p.srcC)&wr: req=max(req,war)
                if pk=='salu' and 'm0' in pw and k=='dma': req=max(req,1)
                if pk=='vst' and isvalu and (set(p.rd)&wr): req=max(req,2)
                if pk=='vst' and k in('dsr','vld') and (set(p.rd)&wr): req=max(req,1)
                if req>d and req-d>need:
                    need=req-d; why=f'{p.text}  ->  {ins.text} (have {d}, need {req})'
            if need>0:
                if verbose: print('HAZARD',why)
                if not fix: raise RuntimeError(why)
                ins.pre_nop+=need; pos+=need; fixed+=need
            hist.append((ins,pos));
            if ins.kind=='nop':
                pos+=int(ins.text.split()[1])+1
            else: pos+=1
            if len(hist)>40: hist.pop(0)
        total_fixed+=fixed
        if fixed==0: return total_fixed
    raise RuntimeError('hazards did not converge')
```

```python
import argparse, sys
from ir import *
import asmlib

ap=argparse.ArgumentParser()
ap.add_argument('--out',default='attn')
ap.add_argument('--final',type=int,default=0)
ap.add_argument('--L',type=int,default=3)
ap.add_argument('--NB',type=int,default=4)
ap.add_argument('--bpos',type=int,default=6)
ap.add_argument('--dsp',type=int,default=2)
ap.add_argument('--w0',type=int,default=3)
ap.add_argument('--qpol',default='sc1 nt')
ap.add_argument('--kvpol',default='nt')
ap.add_argument('--opol',default='sc1 nt')
ap.add_argument('--thr',default='0x4b800000')
ap.add_argument('--stamp',type=int,default=0)
ap.add_argument('--abl',default='')
ap.add_argument('--pkmul',type=int,default=1)
a=ap.parse_args()
ABL=set(a.abl.split(',')) if a.abl else set()

NAME='standalone__gqa_softmax__near_ridge_kernel'
HEADB=512*384; HALFB=HEADB//2; TILE=12288; GRP=4*TILE; RING=12*TILE
STG=RING
ITEMSTEP=128*HEADB
C_SCALE=0.10411773
import math, struct
def f2u(x): return struct.unpack('<I',struct.pack('<f',x))[0]
C_SCALE=math.log2(math.e)/math.sqrt(192.0)

sW=3
sQP,sKP,sVP,sOP=4,6,8,10
SRDQ,SRDK,SRDV,SRDO=12,16,20,24
sC,sTHR,sITEM,sHOFF=28,29,30,31
sG=[32,33,34]; sGW=[35,36,37]
sSOF,sT0=38,39
sRET=40
sNC=42; sNOFF,sNQ,sNK=43,44,45
sQS=[46,47]; sT1,sT2=48,49
sST=50
vKA=[1,2,3,4]; vVA=[5,6]; vDK=[7,8,9]; vDV=[10,11,12]
vOR,vOG=13,14
vNEG=[16,17]; vLS=[18,19]; vTS=[20,21]; vTM=[22,23]
vT=list(range(24,32))
VQ=32
vS=[64,96]
vP=[128,144]
vF=160
vKPAT=[192,193,194,195]; vVPAT=[196,197]
vOW=list(range(198,206))
vE=208
AQ=192
def vr(b,n=1): return f'v{b}' if n==1 else f'v[{b}:{b+n-1}]'
def ar(b,n=1): return f'a{b}' if n==1 else f'a[{b}:{b+n-1}]'
def sr(b,n=1): return f's{b}' if n==1 else f's[{b}:{b+n-1}]'
def qfrag(qb,k):
    i=qb*12+k
    return ar(AQ+4*i,4) if i<16 else vr(VQ+4*(i-16),4)
def oacc(qb,db): return ar(qb*96+db*16,16)
L=a.L; NB=a.NB
assert NB>L and 24%NB==0 and NB<=8

def tile_of(p):
    if p>=40:
        k,i,_=tile_of(p-40); return (k,i,True)
    if p<0:
        k,i,n=tile_of(p+40); assert n; return (k,i,False)
    if p<=29: return ('K',p//2+1,False) if p%2==0 else ('V',p//2,False)
    if p==30: return ('V',15,False)
    if p<=38: return ('Q',p-31,True)
    return ('K',0,True)
def posK(j): return -1 if j==0 else 2*(j-1)
def posV(j): return 30 if j==15 else 2*j+1
def grp(p): return (p//4)%3
def tig(p): return p%4

def dma_tile(p):
    kind,idx,_=tile_of(p)
    srd={'Q':SRDQ,'K':SRDK,'V':SRDV}[kind]
    vo=vDV if kind=='V' else vDK
    pol=a.qpol if kind=='Q' else a.kvpol
    out=[I(f's_add_u32 m0, {sr(sGW[grp(p)])}, {tig(p)*TILE}'), I(f's_mov_b32 {sr(sSOF)}, {idx*TILE}')]
    for j in range(3):
        off=f' offset:{1024*j}' if j else ''
        if 'nodma' in ABL: continue
        out.append(I(f'buffer_load_dwordx4 {vr(vo[j])}, {sr(srd,4)}, {sr(sSOF)} offen{off} {pol} lds',meta={'pos':p}))
    return out
def need(*ps,lgkm0=False):
    return I('NEED',meta={'tiles':list(ps),'lgkm0':lgkm0})
def bar(): return I('s_barrier')

def prologue():
    o=[]; e=lambda t,**k:o.append(I(t,**k))
    e('s_cmp_ge_u32 s2, 256'); e('s_cbranch_scc1 L_end')
    e('s_load_dwordx4 s[4:7], s[0:1], 0'); e('s_load_dwordx4 s[8:11], s[0:1], 16')
    if a.stamp: e('s_load_dwordx2 s[60:61], s[0:1], 40')
    e('v_lshrrev_b32 v24, 6, v0'); e('v_and_b32 v25, 63, v0')
    e(f'v_readfirstlane_b32 {sr(sW)}, v24')
    e(f's_and_b32 {sr(sT0)}, s2, 7'); e(f's_lshr_b32 {sr(sT1)}, s2, 4'); e(f's_lshl_b32 {sr(sT1)}, {sr(sT1)}, 3')
    e(f's_add_u32 {sr(sT0)}, {sr(sT0)}, {sr(sT1)}'); e(f's_mul_i32 {sr(sHOFF)}, {sr(sT0)}, {HEADB}')
    e(f's_lshr_b32 {sr(sT1)}, s2, 3'); e(f's_and_b32 {sr(sT1)}, {sr(sT1)}, 1'); e(f's_mul_i32 {sr(sT2)}, {sr(sT1)}, {HALFB}')
    e(f's_lshl_b32 {sr(sT0)}, {sr(sW)}, 3')
    for j in range(3):
        e(f'v_add_u32 v26, {64*j}, v25')
        e('v_mul_u32_u24 v27, 2731, v26'); e('v_lshrrev_b32 v27, 16, v27')
        e('v_mul_u32_u24 v28, 24, v27'); e('v_sub_u32 v28, v26, v28')
        e(f'v_add_u32 v27, {sr(sT0)}, v27')
        e('v_lshrrev_b32 v29, 1, v27'); e('v_and_b32 v30, 7, v29'); e('v_xor_b32 v30, v30, v28')
        e('v_mul_u32_u24 v31, 384, v27')
        e(f'v_lshl_add_u32 {vr(vDK[j])}, v30, 4, v31'); e(f'v_subrev_u32 {vr(vDK[j])}, {1024*j}, {vr(vDK[j])}')
        e('v_and_b32 v30, 1, v29'); e('v_lshlrev_b32 v30, 2, v30'); e('v_xor_b32 v30, v30, v28')
        e(f'v_lshl_add_u32 {vr(vDV[j])}, v30, 4, v31'); e(f'v_subrev_u32 {vr(vDV[j])}, {1024*j}, {vr(vDV[j])}')
    e('s_waitcnt lgkmcnt(0)')
    e(f's_add_u32 s4, s4, {sr(sT2)}'); e('s_addc_u32 s5, s5, 0')
    e(f's_add_u32 s10, s10, {sr(sT2)}'); e('s_addc_u32 s11, s11, 0')
    for srd,ptr,n in ((SRDQ,sQP,HALFB),(SRDK,sKP,HEADB),(SRDV,sVP,HEADB),(SRDO,sOP,HALFB)):
        e(f's_add_u32 {sr(srd)}, {sr(ptr)}, {sr(sHOFF)}'); e(f's_addc_u32 {sr(srd+1)}, {sr(ptr+1)}, 0')
        e(f's_mov_b32 {sr(srd+2)}, {n}'); e(f's_mov_b32 {sr(srd+3)}, 0x20000')
    e(f's_mul_i32 {sr(sT0)}, {sr(sW)}, 3072')
    for j in range(3):
        e(f's_mov_b32 {sr(sG[j])}, {j*GRP}'); e(f's_add_u32 {sr(sGW[j])}, {sr(sT0)}, {j*GRP}')
    for p in range(-9,3): o.extend(dma_tile(p))
    e(f's_mov_b32 {sr(sC)}, {hex(f2u(C_SCALE))}'); e(f's_mov_b32 {sr(sNC)}, {hex(f2u(-C_SCALE))}')
    e(f's_mov_b32 {sr(sTHR)}, {a.thr}'); e(f's_mov_b32 {sr(sITEM)}, 0')
    e('v_and_b32 v26, 31, v25'); e('v_lshrrev_b32 v27, 5, v25')
    e('v_mul_u32_u24 v28, 384, v26'); e('v_bfe_u32 v29, v26, 1, 3')
    for j in range(4):
        e(f'v_add_u32 v30, {2*j}, v27'); e('v_xor_b32 v30, v30, v29'); e(f'v_lshl_add_u32 {vr(vKPAT[j])}, v30, 4, v28')
    e('v_and_b32 v26, 15, v25'); e('v_lshrrev_b32 v28, 2, v26'); e('v_lshl_add_u32 v28, v27, 2, v28')
    e('v_mul_u32_u24 v28, 384, v28')
    e('v_bfe_u32 v29, v25, 4, 1'); e('v_lshlrev_b32 v29, 1, v29'); e('v_bfe_u32 v30, v26, 1, 1'); e('v_add_u32 v29, v29, v30')
    e('v_lshl_add_u32 v28, v29, 4, v28'); e('v_and_b32 v30, 1, v26'); e('v_lshl_add_u32 v28, v30, 3, v28')
    e('v_bfe_u32 v30, v26, 3, 1'); e('v_lshlrev_b32 v30, 6, v30')
    e(f'v_add_u32 {vr(vVPAT[0])}, v28, v30'); e('v_xor_b32 v30, 64, v30'); e(f'v_add_u32 {vr(vVPAT[1])}, v28, v30')
    e(f's_lshl_b32 {sr(sT0)}, {sr(sW)}, 12'); e(f's_add_u32 {sr(sT0)}, {sr(sT0)}, {STG}')
    e('v_and_b32 v26, 31, v25'); e('v_lshlrev_b32 v28, 7, v26'); e('v_lshl_add_u32 v28, v27, 3, v28'); e(f'v_add_u32 v28, {sr(sT0)}, v28')
    e('v_and_b32 v29, 7, v26')
    for c in range(8):
        e(f'v_xor_b32 v30, {c}, v29'); e(f'v_lshl_add_u32 {vr(vOW[c])}, v30, 4, v28')
    e('v_lshrrev_b32 v26, 3, v25'); e('v_and_b32 v28, 7, v25'); e('v_xor_b32 v29, v28, v26')
    e('v_lshlrev_b32 v30, 7, v26'); e('v_lshl_add_u32 v30, v29, 4, v30'); e(f'v_add_u32 {vr(vOR)}, {sr(sT0)}, v30')
    e(f's_lshl_b32 {sr(sT1)}, {sr(sW)}, 6'); e(f'v_add_u32 v26, {sr(sT1)}, v26'); e('v_mul_u32_u24 v26, 384, v26')
    e(f'v_lshl_add_u32 {vr(vOG)}, v28, 4, v26')
    for qb in range(2):
        e(f's_lshl_b32 {sr(sT0)}, {sr(sW)}, 1'); e(f's_add_u32 {sr(sT0)}, {sr(sT0)}, {(31+qb)%12}')
        e(f's_cmp_ge_u32 {sr(sT0)}, 12'); e(f's_cselect_b32 {sr(sT1)}, 12, 0'); e(f's_sub_u32 {sr(sT0)}, {sr(sT0)}, {sr(sT1)}')
        e(f's_mul_i32 {sr(sQS[qb])}, {sr(sT0)}, {TILE}')
    if a.stamp:
        e(f's_mov_b32 s62, 0x1000000'); e('s_mov_b32 s63, 0x20000')
        e('s_memtime s[50:51]')
        e('s_memrealtime s[56:57]')
        e('s_waitcnt lgkmcnt(0)')
    return o

def q_section(base):
    o=[]; e=lambda t,**k:o.append(I(t,**k))
    o.append(need(*range(base,base+8),lgkm0=True)); o.append(bar())
    if base==31:
        for p in (41,42): o.extend(dma_tile(p))
    for qb in range(2):
        if base==31:
            e(f's_add_u32 {sr(sT0)}, {sr(sQS[qb])}, {sr(sG[0])}')
        else:
            e(f's_add_u32 {sr(sT0)}, {sr(sQS[qb])}, {2*GRP}')
        e(f's_cmp_ge_u32 {sr(sT0)}, {RING}'); e(f's_cselect_b32 {sr(sT1)}, {RING}, 0'); e(f's_sub_u32 {sr(sT0)}, {sr(sT0)}, {sr(sT1)}')
        for j in range(4): e(f'v_add_u32 {vr(vT[qb*4+j])}, {sr(sT0)}, {vr(vKPAT[j])}')
    for qb in range(2):
        for k in range(12):
            e(f'ds_read_b128 {qfrag(qb,k)}, {vr(vT[qb*4+(k&3)])} offset:{(k>>2)*128}')
    o.append(need(lgkm0=True)); o.append(bar())
    for p in range(base+12,base+20): o.extend(dma_tile(p))
    return o

class Gap:
    def __init__(s): s.mfma=None; s.must=[]; s.fill=[]; s.tail=[]
def cost(l): return sum(i.cost for i in l)

def build_item():
    G=[Gap() for _ in range(768)]
    def gA(t,i): return (24+48*t+i) if t>=0 else i
    def gB(t,i): return (24+48*t+24+i) if t<15 else (24+48*15+i)
    frags=[]
    for t in range(-1,16):
        if t<=14:
            sb=vS[(t+1)&1]
            for k in range(12):
                phi=len(frags); fb=vF+4*(phi%NB); frags.append(('K',t+1,k,gA(t,2*k)))
                for qb in range(2):
                    d=vr(sb+16*qb,16); c='0' if k==0 else d
                    G[gA(t,2*k+qb)].mfma=I(f'v_mfma_f32_32x32x16_bf16 {d}, {vr(fb,4)}, {qfrag(qb,k)}, {c}')
        if t>=0:
            pb=vP[t&1]
            for f in range(12):
                u,db=divmod(f,6)
                phi=len(frags); fb=vF+4*(phi%NB); frags.append(('V',t,f,gB(t,2*f)))
                for qb in range(2):
                    d=oacc(qb,db); c='0' if (t==0 and u==0) else d
                    G[gB(t,2*f+qb)].mfma=I(f'v_mfma_f32_32x32x16_bf16 {d}, {vr(fb,4)}, {vr(pb+8*qb+4*u,4)}, {c}')
    assert len(frags)==384
    for phi,fr in enumerate(frags): assert fr[3]==2*phi
    pre=[]
    curK=[None]; curV=[None]
    def reads(phi):
        kind,ti,fi,_=frags[phi]; fb=vF+4*(phi%NB); o=[]
        if kind=='K':
            p=posK(ti)
            if curK[0]!=grp(p):
                curK[0]=grp(p)
                o+= [I(f'v_add_u32 {vr(vKA[j])}, {sr(sG[grp(p)])}, {vr(vKPAT[j])}') for j in range(4)]
            r=[I(f'ds_read_b128 {vr(fb,4)}, {vr(vKA[fi&3])} offset:{tig(p)*TILE+(fi>>2)*128}')]
        else:
            p=posV(ti); u,db=divmod(fi,6)
            if curV[0]!=grp(p):
                curV[0]=grp(p)
                o+= [I(f'v_add_u32 {vr(vVA[j])}, {sr(sG[grp(p)])}, {vr(vVPAT[j])}') for j in range(2)]
            r=[I(f'ds_read_b64_tr_b16 {vr(fb+2*jj,2)}, {vr(vVA[db&1])} offset:{tig(p)*TILE+(16*u+8*jj)*384+(db>>1)*128}') for jj in range(2)]
        return o,r
    for phi in range(384):
        adr,r=reads(phi)
        if 'nolds' in ABL: r=[]
        if phi<L: pre+=adr+r
        else:
            g=2*(phi-L)
            if adr: G[g-1].must+=adr
            if r: G[g].must.append(r[0])
            if len(r)>1: G[g+1].must.append(r[1])
    def place_dma(ps,g0):
        g=g0
        for p in ps:
            ins=dma_tile(p)
            setup=[x for x in ins if x.kind!='dma']; ld=[x for x in ins if x.kind=='dma']
            G[g].must+=setup
            for x in ld:
                G[g].must.append(x); g+=a.dsp
    def place_bar(g,needs,ps):
        G[g].must=[need(*needs),bar()]+G[g].must
        place_dma(ps,g+1)
    place_bar(gA(0,1),[posV(0)],[51-40])
    for t in range(0,15):
        needs=[posV(t+1)]+([posK(t+2)] if t<=13 else [])
        ps=[12] if t==0 else [2*t+11,2*t+12]
        place_bar(gB(t,a.bpos),needs,ps)
    grpS=[I(f's_add_u32 {sr(sNOFF)}, {sr(sHOFF)}, {ITEMSTEP}'),I(f's_cmp_lt_u32 {sr(sITEM)}, 3'),
          I(f's_cselect_b32 {sr(sNOFF)}, {sr(sNOFF)}, 0'),I(f's_cselect_b32 {sr(sNQ)}, {HALFB}, 0'),I(f's_cselect_b32 {sr(sNK)}, {HEADB}, 0')]
    def mv(srd,ptr,off,n=None):
        o=[I(f's_add_u32 {sr(srd)}, {sr(ptr)}, {sr(off)}'),I(f's_addc_u32 {sr(srd+1)}, {sr(ptr+1)}, 0')]
        if n is not None: o.append(I(f's_mov_b32 {sr(srd+2)}, {sr(n)}'))
        return o
    G[gA(2,3)].must+=grpS
    G[gA(2,9)].must+=mv(SRDQ,sQP,sNOFF,sNQ)
    G[gA(2,13)].must+=mv(SRDO,sOP,sHOFF)
    G[gA(11,5)].must+=mv(SRDK,sKP,sNOFF,sNK)
    G[gA(12,5)].must+=mv(SRDV,sVP,sNOFF,sNK)
    def sm_ops(t):
        sb=vS[t&1]; pb=vP[t&1]; F=[];X=[];A=[];Cv=[]
        ops=[]
        def el(e): return e>>4, e&15
        for i in range(34):
            if i<32:
                qb,r=el(i); ops.append(I(f'v_fma_f32 {vr(vT[i%8])}, {vr(sb+i)}, {sr(sC)}, {vr(vNEG[qb])}'))
            j=i-1
            if 0<=j<32: ops.append(I(f'v_exp_f32 {vr(vT[j%8])}, {vr(vT[j%8])}'))
            j=i-2
            if 0<=j<32:
                qb,r=el(j)
                if r==1: ops.append(I(f'v_add_f32 {vr(vTS[qb])}, {vr(vT[(j-1)%8])}, {vr(vT[j%8])}'))
                elif r>1: ops.append(I(f'v_add_f32 {vr(vTS[qb])}, {vr(vTS[qb])}, {vr(vT[j%8])}'))
                if r&1: ops.append(I(f'v_cvt_pk_bf16_f32 {vr(pb+8*qb+(r>>1))}, {vr(vT[(j-1)%8])}, {vr(vT[j%8])}'))
        if 'nosm' in ABL: ops=[]
        return ops
    def gcap(g):
        c=24-cost(G[g].must)
        if g+1<768 and (g+1)%2==0 and 'nolds' not in ABL: c-=4
        return max(c,2)
    def distribute(ops,gaps):
        caps=[gcap(g) for g in gaps]; tot=sum(caps); nd=cost(ops)
        cum=0.0; acc=0; i=0
        for g,c in zip(gaps,caps):
            cum+=c*nd/tot
            while i<len(ops) and acc+ops[i].cost/2<=cum:
                G[g].fill.append(ops[i]); acc+=ops[i].cost; i+=1
        G[gaps[-1]].fill+=ops[i:]
    tramp=[]
    def check(t):
        o=[]
        if t==0:
            o=[I(f'v_mov_b32 {vr(vLS[qb])}, {vr(vTS[qb])}') for qb in range(2)]
        else:
            if 'nochk' not in ABL:
                o.append(I(f'v_max_f32 {vr(vTM[0])}, {vr(vTS[0])}, {vr(vTS[1])}'))
                o.append(I(f'v_cmp_lt_f32 vcc, {sr(sTHR)}, {vr(vTM[0])}'))
                o.append(I(f's_cbranch_vccnz L_tr{t}'))
                o.append(I(f'L_bk{t}:'))
                tramp.append(t)
            o+= [I(f'v_add_f32 {vr(vLS[qb])}, {vr(vLS[qb])}, {vr(vTS[qb])}') for qb in range(2)]
        return o
    for t in range(0,16):
        if t==0: gaps=[gA(0,i) for i in range(2,23)]
        elif t<15: gaps=[gB(t-1,i) for i in range(a.w0,24)]+[gA(t,i) for i in range(0,23)]
        else: gaps=[gB(14,i) for i in range(a.w0,24)]
        last=gA(t,23) if t<15 else gB(14,23)
        distribute(sm_ops(t),gaps)
        G[last].tail=check(t)
    x0=[]
    sb=vS[0]
    for qb in range(2):
        pass
    mxs=[[],[]]
    for qb in range(2):
        b=sb+16*qb; m=vr(vTM[qb])
        mxs[qb].append(I(f'v_max3_f32 {m}, {vr(b)}, {vr(b+1)}, {vr(b+2)}'))
        for r in range(3,15,2): mxs[qb].append(I(f'v_max3_f32 {m}, {m}, {vr(b+r)}, {vr(b+r+1)}'))
        mxs[qb].append(I(f'v_max_f32 {m}, {m}, {vr(b+15)}'))
    for x,y in zip(*mxs): x0+=[x,y]
    for qb in range(2): x0.append(I(f'v_mov_b32 {vr(vT[qb])}, {vr(vTM[qb])}'))
    x0.append(I('s_nop 0'))
    for qb in range(2): x0.append(I(f'v_permlane32_swap_b32 {vr(vT[qb])}, {vr(vTM[qb])}'))
    for qb in range(2): x0.append(I(f'v_max_f32 {vr(vTM[qb])}, {vr(vT[qb])}, {vr(vTM[qb])}'))
    for qb in range(2): x0.append(I(f'v_mul_f32 {vr(vNEG[qb])}, {sr(sNC)}, {vr(vTM[qb])}'))
    body=[I('L_item:')]
    body+=[need(posK(0),posK(1)),bar()]
    body+=pre
    for g in range(768):
        gp=G[g]
        body.append(gp.mfma)
        nb=[x for x in gp.must if x.kind in('need','bar')]
        rest=[x for x in gp.must if x.kind not in('need','bar')]
        body+=nb+rest+gp.fill+gp.tail
        if g==23: body+=x0
    return body,tramp

def epilogue():
    o=[]; e=lambda t,**k:o.append(I(t,**k))
    for qb in range(2): e(f'v_mov_b32 {vr(vT[qb])}, {vr(vLS[qb])}')
    e('s_nop 0')
    for qb in range(2): e(f'v_permlane32_swap_b32 {vr(vT[qb])}, {vr(vLS[qb])}')
    for qb in range(2): e(f'v_add_f32 {vr(vLS[qb])}, {vr(vT[qb])}, {vr(vLS[qb])}')
    for qb in range(2): e(f'v_rcp_f32 {vr(vLS[qb])}, {vr(vLS[qb])}')
    X=[vS[0],vS[1]]; PK=[vP[0],vP[1]]; RB=[vE,vE+16]
    chunks=[(qb,dp) for qb in range(2) for dp in range(3)]
    def conv(ci):
        qb,dp=chunks[ci]; x=X[ci&1]; pk=PK[ci&1]; oo=[]
        rd=[I(f'v_accvgpr_read_b32 {vr(x+i)}, {ar(qb*96+dp*32+i)}') for i in range(32)]
        if a.pkmul:
            ml=[I(f'v_pk_mul_f32 {vr(x+2*i,2)}, {vr(x+2*i,2)}, {vr(vLS[qb]&~1,2)} op_sel:[0,{qb}] op_sel_hi:[1,{qb}]') for i in range(16)]
        else:
            ml=[I(f'v_mul_f32 {vr(x+i)}, {vr(x+i)}, {vr(vLS[qb])}') for i in range(32)]
        cv=[I(f'v_cvt_pk_bf16_f32 {vr(pk+i)}, {vr(x+2*i)}, {vr(x+2*i+1)}') for i in range(16)]
        wr=[I(f'ds_write_b64 {vr(vOW[c])}, {vr(pk+2*c,2)}') for c in range(8)]
        for c in range(8):
            oo+=rd[4*c:4*c+4]
            if c>0:
                oo+= (ml[2*(c-1):2*(c-1)+2] if a.pkmul else ml[4*(c-1):4*(c-1)+4])
            if c>1: oo+=cv[2*(c-2):2*(c-2)+2]+[wr[c-2]]
        oo+= (ml[14:16] if a.pkmul else ml[28:32])
        oo+=cv[12:14]+[wr[6]]+cv[14:16]+[wr[7]]
        rb=RB[ci&1]
        rdb=[I(f'ds_read_b128 {vr(rb+4*i,4)}, {vr(vOR)} offset:{i*1024}') for i in range(4)]
        return oo,rdb
    def stores(ci):
        qb,dp=chunks[ci]; rb=RB[ci&1]; oo=[]
        for i in range(4):
            oo.append(I(f's_mov_b32 {sr(sSOF)}, {(32*qb+8*i)*384+dp*128}'))
            if 'nost' not in ABL:
                oo.append(I(f'buffer_store_dwordx4 {vr(rb+4*i,4)}, {vr(vOG)}, {sr(SRDO,4)}, {sr(sSOF)} offen {a.opol}'))
        return oo
    for ci in range(6):
        cv,rdb=conv(ci)
        if ci>0:
            o+=cv[:12]+stores(ci-1)+cv[12:]
        else: o+=cv
        o+=rdb
    o+=stores(5)
    return o

def rotate():
    o=[]; e=lambda t:o.append(I(t))
    for arr in (sG,sGW):
        e(f's_mov_b32 {sr(sT0)}, {sr(arr[0])}'); e(f's_mov_b32 {sr(arr[0])}, {sr(arr[1])}')
        e(f's_mov_b32 {sr(arr[1])}, {sr(arr[2])}'); e(f's_mov_b32 {sr(arr[2])}, {sr(sT0)}')
    e(f's_add_u32 {sr(sHOFF)}, {sr(sHOFF)}, {ITEMSTEP}')
    e(f's_add_u32 {sr(sITEM)}, {sr(sITEM)}, 1')
    return o

def rare(par):
    o=[]; e=o.append
    sb=vS[par]; pb=vP[par]
    e(f'L_rare{par}:'); e('s_nop 15'); e('s_nop 3')
    for qb in range(2):
        b=sb+16*qb; m=vr(vTM[0]); t=vr(vTM[1])
        e(f'v_max3_f32 {m}, {vr(b)}, {vr(b+1)}, {vr(b+2)}')
        for r in range(3,15,2): e(f'v_max3_f32 {m}, {m}, {vr(b+r)}, {vr(b+r+1)}')
        e(f'v_max_f32 {m}, {m}, {vr(b+15)}')
        e(f'v_mov_b32 {t}, {m}'); e('s_nop 1'); e(f'v_permlane32_swap_b32 {t}, {m}'); e('s_nop 1')
        e(f'v_max_f32 {m}, {t}, {m}')
        e(f'v_mul_f32 {m}, {sr(sNC)}, {m}')
        e(f'v_min_f32 {m}, {m}, {vr(vNEG[qb])}')
        e(f'v_sub_f32 {t}, {m}, {vr(vNEG[qb])}')
        e(f'v_exp_f32 {t}, {t}'); e(f'v_mov_b32 {vr(vNEG[qb])}, {m}')
        e(f'v_mul_f32 {vr(vLS[qb])}, {vr(vLS[qb])}, {t}')
        for i in range(96):
            x=vr(vT[i%4])
            e(f'v_accvgpr_read_b32 {x}, {ar(qb*96+i)}'); e(f'v_mul_f32 {x}, {x}, {t}'); e(f'v_accvgpr_write_b32 {ar(qb*96+i)}, {x}')
        for r in range(0,16,2):
            x,y=vr(vT[0]),vr(vT[1])
            e(f'v_fma_f32 {x}, {vr(b+r)}, {sr(sC)}, {vr(vNEG[qb])}'); e(f'v_fma_f32 {y}, {vr(b+r+1)}, {sr(sC)}, {vr(vNEG[qb])}')
            e(f'v_exp_f32 {x}, {x}'); e(f'v_exp_f32 {y}, {y}'); e('s_nop 0')
            e(f'v_cvt_pk_bf16_f32 {vr(pb+8*qb+(r>>1))}, {x}, {y}')
            if r==0: e(f'v_add_f32 {vr(vTS[qb])}, {x}, {y}')
            else:
                e(f'v_add_f32 {vr(vTS[qb])}, {vr(vTS[qb])}, {x}'); e(f'v_add_f32 {vr(vTS[qb])}, {vr(vTS[qb])}, {y}')
    e('s_nop 3'); e(f's_setpc_b64 {sr(sRET,2)}')
    return o

def stamp(slot):
    o=[]
    if not a.stamp: return o
    e=lambda t:o.append(I(t))
    e('s_memtime s[52:53]'); e('s_waitcnt lgkmcnt(0)'); e('s_sub_u32 s52, s52, s50')
    e(f's_lshl_b32 s54, s2, 2'); e(f's_add_u32 s54, s54, {sr(sW)}'); e('s_lshl_b32 s54, s54, 8')
    e(f's_lshl_b32 s55, {sr(sITEM)}, 5'); e('s_add_u32 s54, s54, s55'); e(f's_add_u32 s54, s54, {slot*4}')
    e('v_mov_b32 v254, s52'); e('v_mov_b32 v255, s54')
    o.append(I('buffer_store_dword v254, v255, s[60:63], 0 offen'))
    return o

pro=prologue()
qs0=q_section(-9)
item,tramp=build_item()
bound=q_section(31)
epi=epilogue()
rot=rotate()
loopend=[I(f's_cmp_lt_u32 {sr(sITEM)}, 4'),I('s_cbranch_scc1 L_item')]
if a.stamp:
    idx=[i for i,x in enumerate(item) if x.kind=='mfma']
    item=item[:3]+stamp(0)+item[3:]+stamp(1)
    bound=bound+stamp(2)
    epi=epi+stamp(3)
    fin=[I('s_memtime s[52:53]'),I('s_memrealtime s[58:59]'),I('s_waitcnt lgkmcnt(0)'),I('s_sub_u32 s52, s52, s50'),I('s_sub_u32 s58, s58, s56'),
         I('s_lshl_b32 s54, s2, 2'),I(f's_add_u32 s54, s54, {sr(sW)}'),I('s_lshl_b32 s54, s54, 8'),I('s_add_u32 s54, s54, 128'),
         I('v_mov_b32 v252, s52'),I('v_mov_b32 v253, s58'),I('v_mov_b32 v255, s54'),I('buffer_store_dwordx2 v[252:253], v255, s[60:63], 0 offen')]
else: fin=[]
body=item+bound+epi+rot+loopend
def trace():
    for x in pro: yield x,0
    for x in qs0: yield x,0
    for it in range(4):
        for x in body: yield x,40*it
    for x in fin: yield x,160
insert_waits(trace)
nf=check_hazards(trace)
insert_waits(trace)
nf+=check_hazards(trace)
print('nops inserted:',nf,file=sys.stderr)
lines=[]
for x in pro+qs0+body+fin: lines+=materialize(x)
lines.append('L_end:'); lines.append('s_endpgm')
for t in tramp:
    lines+=[f'L_tr{t}:',f's_call_b64 {sr(sRET,2)}, L_rare{t&1}',f's_branch L_bk{t}']
if tramp:
    lines+=rare(0)+rare(1)
txt='\n'.join(lines)
hdr=open('standalone__gqa_softmax__near_ridge.s.ref').read().split('; Override launch')[0]
hdr+='; Persistent kernel: 256 workgroups x 4 waves; a workgroup owns 256 query rows of a head per item, 4 items each.\n'
if a.final:
    s=asmlib.wrap(NAME,txt,vgpr=512,accum=256,sgpr=102,grid=256,block=256,lds=163840,meta=False,header=hdr)
    open(a.out,'w').write(s)
else:
    asmlib.build(NAME,txt,a.out,vgpr=512,accum=256,sgpr=102,grid=256,block=256,lds=163840)
nins=sum(1 for l in lines if not l.endswith(':'))
print('instructions:',nins,file=sys.stderr)
```

```python
import re
REG=re.compile(r'(?<![\w.])([vas])(?:(\d+)|\[(\d+):(\d+)\])(?![\w])')
def regs_of(tok):
    out=[]
    tok=tok.strip()
    for m in REG.finditer(tok):
        f=m.group(1)
        if m.group(2) is not None: out.append(f+m.group(2))
        else: out+= [f+str(i) for i in range(int(m.group(3)),int(m.group(4))+1)]
    if re.search(r'\bvcc\b',tok): out.append('vcc')
    if re.search(r'\bm0\b',tok): out.append('m0')
    if re.search(r'\bexec\b',tok): out.append('exec')
    return out
TRANS=('v_exp_f32_e64','v_exp_f32','v_log_f32','v_rcp_f32','v_rsq_f32','v_sqrt_f32')
class Ins:
    __slots__=('text','kind','rd','wr','meta','pre_lgkm','pre_vm','pre_nop','mn','passes','srcC','cost')
    def __init__(s,text,meta=None,cost=None):
        s.text=text; s.meta=meta; s.pre_lgkm=None; s.pre_vm=None; s.pre_nop=0; s.passes=0; s.srcC=[]
        t=text.split(';')[0].strip()
        s.rd=[]; s.wr=[]
        if t.endswith(':') or t=='' or t.startswith('.'):
            s.kind='label'; s.mn=''; s.cost=0; return
        p=t.split(None,1); mn=p[0]; s.mn=mn
        ops=[o.strip() for o in p[1].split(',')] if len(p)>1 else []
        R=lambda o: regs_of(o)
        if mn=='NEED': s.kind='need'; s.cost=4; return
        if mn=='TOUCH': s.kind='touch'; s.rd=R(p[1]); s.cost=0; return
        if mn.startswith('v_mfma'):
            s.kind='mfma'; s.wr=R(ops[0]); s.rd=R(ops[1])+R(ops[2])+R(ops[3]); s.srcC=R(ops[3])
            s.passes=8 if '32x32x16' in mn else 4
        elif mn.startswith('v_cmp'):
            s.kind='valu'; s.wr=R(ops[0]); s.rd=sum((R(o) for o in ops[1:]),[])
        elif mn.startswith('v_permlane') and 'swap' in mn:
            s.kind='valu'; s.wr=R(ops[0])+R(ops[1]); s.rd=list(s.wr)
        elif mn.startswith('v_'):
            s.kind='trans' if mn in TRANS else 'valu'
            s.wr=R(ops[0]); s.rd=sum((R(o) for o in ops[1:]),[])
            if mn.startswith(('v_fmac','v_dot2c','v_writelane')): s.rd+=s.wr
            if mn.startswith('v_cndmask') and len(ops)==3: s.rd.append('vcc')
        elif mn.startswith('ds_read'):
            s.kind='dsr'; s.wr=R(ops[0]); s.rd=R(ops[1])
        elif mn.startswith('ds_write'):
            s.kind='dsw'; s.rd=R(ops[0])+R(ops[1])
        elif mn.startswith('buffer_load'):
            if re.search(r'\blds\b',t):
                s.kind='dma'; s.rd=sum((R(o) for o in ops),[])+['m0']
            else:
                s.kind='vld'; s.wr=R(ops[0]); s.rd=sum((R(o) for o in ops[1:]),[])
        elif mn.startswith('buffer_store'):
            s.kind='vst'; s.rd=sum((R(o) for o in ops),[])
        elif mn=='s_barrier': s.kind='bar'
        elif mn=='s_waitcnt': s.kind='wait'
        elif mn=='s_nop': s.kind='nop'
        elif mn.startswith(('s_cbranch','s_branch','s_call','s_setpc','s_endpgm')):
            s.kind='br'
            if 'vcc' in mn: s.rd=['vcc']
            if 'scc' in mn: s.rd=['scc']
        elif mn.startswith('s_cmp'):
            s.kind='salu'; s.rd=sum((R(o) for o in ops),[]); s.wr=['scc']
        elif mn.startswith(('s_load','s_memtime','s_memrealtime')):
            s.kind='smem'; s.wr=R(ops[0]); s.rd=sum((R(o) for o in ops[1:]),[])
        elif mn.startswith('s_'):
            s.kind='salu'; s.wr=R(ops[0]); s.rd=sum((R(o) for o in ops[1:]),[])
            if mn.startswith(('s_cselect','s_addc','s_subb')): s.rd.append('scc')
            if not mn.startswith(('s_mov','s_cselect','s_mul_i32','s_setprio','s_sleep')): s.wr.append('scc')
        else:
            raise ValueError('unknown instr '+t)
        if cost is not None: s.cost=cost
        else:
            s.cost={'trans':8,'mfma':8,'label':0}.get(s.kind,4)
    def __repr__(s): return s.text
def I(text,meta=None,cost=None): return Ins(text,meta,cost)

def insert_waits(trace_fn, maxit=6):
    for it in range(maxit):
        changed=False
        dsq=[]
        vmq=[]
        for ins,ctx in trace_fn():
            k=ins.kind
            if k=='label': continue
            if ins.pre_lgkm is not None:
                n=ins.pre_lgkm
                if len(dsq)>n: del dsq[:len(dsq)-n]
            if ins.pre_vm is not None:
                n=ins.pre_vm
                if len(vmq)>n: del vmq[:len(vmq)-n]
            if k=='wait':
                m=re.search(r'lgkmcnt\((\d+)\)',ins.text)
                if m:
                    n=int(m.group(1))
                    if len(dsq)>n: del dsq[:len(dsq)-n]
                m=re.search(r'vmcnt\((\d+)\)',ins.text)
                if m:
                    n=int(m.group(1))
                    if len(vmq)>n: del vmq[:len(vmq)-n]
                continue
            if k=='need':
                tiles=set(ctx+p for p in ins.meta['tiles'])
                last=-1
                for i,tg in enumerate(vmq):
                    if tg in tiles: last=i
                if last>=0:
                    n=min(63,len(vmq)-1-last)
                    if ins.pre_vm is None or n<ins.pre_vm:
                        ins.pre_vm=n; changed=True
                    del vmq[:len(vmq)-min(len(vmq),ins.pre_vm)]
                if ins.meta.get('lgkm0'):
                    if dsq:
                        if ins.pre_lgkm!=0: ins.pre_lgkm=0; changed=True
                        dsq.clear()
                continue
            touched=set(ins.rd)|set(ins.wr)
            extra=ins.meta.get('also') if isinstance(ins.meta,dict) else None
            if extra: touched|=set(extra)
            last=-1
            for i,d in enumerate(dsq):
                if d & touched: last=i
            if last>=0:
                n=min(15,len(dsq)-1-last)
                if ins.pre_lgkm is None or n<ins.pre_lgkm:
                    ins.pre_lgkm=n; changed=True
                n=ins.pre_lgkm
                del dsq[:len(dsq)-min(n,len(dsq))]
            lastv=-1
            for i,tg in enumerate(vmq):
                if isinstance(tg,frozenset) and (tg & touched): lastv=i
            if lastv>=0:
                n=min(63,len(vmq)-1-lastv)
                if ins.pre_vm is None or n<ins.pre_vm:
                    ins.pre_vm=n; changed=True
                del vmq[:len(vmq)-min(len(vmq),ins.pre_vm)]
            if k=='dsr': dsq.append(set(ins.wr))
            elif k=='dsw': dsq.append(set())
            elif k=='dma': vmq.append(ctx+ins.meta['pos'])
            elif k=='vst': vmq.append(None)
            elif k=='vld': vmq.append(frozenset(ins.wr))
        if not changed: return
    raise RuntimeError('waits did not converge')

def materialize(ins):
    out=[]
    if ins.pre_nop:
        n=ins.pre_nop
        while n>0:
            c=min(n,16); out.append(f's_nop {c-1}'); n-=c
    w=[]
    if ins.pre_vm is not None: w.append(f'vmcnt({ins.pre_vm})')
    if ins.pre_lgkm is not None: w.append(f'lgkmcnt({ins.pre_lgkm})')
    if w: out.append('s_waitcnt '+' '.join(w))
    if ins.kind not in('need','touch'): out.append(ins.text)
    return out

def states_of_pre(ins):
    n=ins.pre_nop
    if ins.pre_vm is not None or ins.pre_lgkm is not None: n+=1
    return n

def check_hazards(trace_fn, fix=True, verbose=True):
    total_fixed=0
    for it in range(8):
        hist=[]
        pos=0; fixed=0
        for ins,ctx in trace_fn():
            if ins.kind=='label': continue
            pos+=states_of_pre(ins)
            if ins.kind in('need','touch'): continue
            need=0; why=''
            k=ins.kind; rd=set(ins.rd); wr=set(ins.wr)
            isvalu=k in('valu','trans')
            for (p,ppos) in reversed(hist):
                d=pos-ppos-1
                if d>=20: break
                req=0
                pw=set(p.wr); pk=p.kind
                if pk in('valu','trans'):
                    vw={r for r in pw if r[0] in 'va' and r!='vcc'}
                    sw=pw-vw
                    if k=='mfma' and vw&rd: req=max(req,2)
                    if ins.mn.startswith('v_permlane') and vw&rd: req=max(req,2)
                    if ins.mn.startswith(('v_readfirstlane','v_readlane')) and vw&rd: req=max(req,1)
                    if pk=='trans' and k=='valu' and vw&rd: req=max(req,1)
                    if isvalu and sw&rd: req=max(req,2)
                    if k in('dma','vst','vld') and sw&rd: req=max(req,5)
                if pk=='mfma':
                    lat={8:12,4:8}[p.passes]; ov={8:10,4:6}[p.passes]; war={8:7,4:3}[p.passes]
                    if k=='mfma':
                        ab=rd-set(ins.srcC) if set(ins.srcC) else rd
                        t=ins.text.split(None,1)[1].split(',')
                        ab=set(regs_of(t[1])+regs_of(t[2]))
                        if pw&ab: req=max(req,lat)
                        c=set(ins.srcC)
                        if pw&c and not (pw==c and p.passes==ins.passes): req=max(req,ov)
                        if pw&wr and not (pw==wr and p.passes==ins.passes): req=max(req,ov)
                    elif isvalu or k in('dsr','dsw','dma','vst','vld'):
                        if pw&(rd|wr): req=max(req,lat)
                        if isvalu and set(p.srcC)&wr: req=max(req,war)
                if pk=='salu' and 'm0' in pw and k=='dma': req=max(req,1)
                if pk=='vst' and isvalu and (set(p.rd)&wr): req=max(req,2)
                if pk=='vst' and k in('dsr','vld') and (set(p.rd)&wr): req=max(req,1)
                if req>d and req-d>need:
                    need=req-d; why=f'{p.text}  ->  {ins.text} (have {d}, need {req})'
            if need>0:
                if verbose: print('HAZARD',why)
                if not fix: raise RuntimeError(why)
                ins.pre_nop+=need; pos+=need; fixed+=need
            hist.append((ins,pos));
            if ins.kind=='nop':
                pos+=int(ins.text.split()[1])+1
            else: pos+=1
            if len(hist)>40: hist.pop(0)
        total_fixed+=fixed
        if fixed==0: return total_fixed
    raise RuntimeError('hazards did not converge')
```

```python
import argparse, sys, math, struct
from ir import *
import asmlib

ap=argparse.ArgumentParser()
A=ap.add_argument
A('--out',default='attn')
A('--final',type=int,default=0)
A('--shape',type=int,default=16)
A('--L',type=int,default=3)
A('--bpos',type=float,default=0.25)
A('--w0',type=int,default=-1)
A('--wend',type=int,default=-1)
A('--qpol',default='sc1 nt'); A('--kvpol',default='nt'); A('--opol',default='sc1 nt')
A('--thr',default='0x4b800000')
A('--stamp',type=int,default=0)
A('--abl',default='')
A('--pkmul',type=int,default=1)
A('--cdma',type=int,default=4)
A('--cds',type=int,default=4)
A('--cdw',type=int,default=8)
A('--vb',type=int,default=-1)
A('--span',type=float,default=0.92)
A('--spanq',type=float,default=0.6)
A('--e41',type=int,default=10); A('--edsp',type=int,default=30); A('--eq0',type=int,default=130); A('--eqsp',type=int,default=5); A('--eqw',type=int,default=20)
A('--nexp',type=int,default=2)
A('--ostep0',type=int,default=5); A('--ostepn',type=int,default=2)
A('--slack',type=int,default=4)
A('--wspread',type=int,default=1)
A('--rs',type=int,default=-1)
A('--bias',type=float,default=20.0)
a=ap.parse_args()
ABL=set(a.abl.split(',')) if a.abl else set()
SH=a.shape
NQ=2 if SH==32 else 4
GPF=NQ
PH=12*GPF
VB=a.vb if a.vb>0 else (24 if SH==32 else 8)
W0=a.w0 if a.w0>=0 else (3 if SH==32 else 5)
WEND=a.wend if a.wend>=0 else (1 if SH==32 else 2)
MF='v_mfma_f32_32x32x16_bf16' if SH==32 else 'v_mfma_f32_16x16x32_bf16'
RS=(a.rs if a.rs>=0 else (1 if SH==16 else 0))
assert not (RS and SH==32)
NRS=4 if RS else 0
EPQ=32//NQ
OPQ=192//NQ

NAME='standalone__gqa_softmax__near_ridge_kernel'
HEADB=512*384; HALFB=HEADB//2; TILE=12288; GRP=4*TILE; RING=12*TILE
STG=RING
ITEMSTEP=128*HEADB
def f2u(x): return struct.unpack('<I',struct.pack('<f',x))[0]
C_SCALE=math.log2(math.e)/math.sqrt(192.0)

sW=3
sQP,sKP,sVP,sOP=4,6,8,10
SRDQ,SRDK,SRDV,SRDO=12,16,20,24
sC,sTHR,sITEM,sHOFF=28,29,30,31
sG=[32,33,34]; sGW=[35,36,37]
sSOF,sT0=38,39
sRET=40
sNC=42; sNOFF,sNQ,sNK=43,44,45
sQS=[46,47]; sT1,sT2=48,49
sSO2=50
sD=51
sBIAS=67
NKA,NVA=(4,2) if SH==32 else (2,4)
vKA=list(range(1,1+NKA)); vVA=list(range(1+NKA,7))
vDK=[7,8,9]; vDV=[10,11,12]; vOR,vOG,vOW=13,14,15
vNEG=[16,17,18,19]; vLS=[20,21,22,23]
vT=list(range(24,32)) if not RS else list(range(24,30))
VQ=32
vS=[64,96]
vP=[128,144]
vF=160; NB=4
vTS=[176,177,178,179]; vTM=[180,181]; vOX=[182,183]
vRB=184
if RS:
    vL=[20,176,184,188]
    vONE=180; vTM=[30,31]; vOX=[31,31]; vLS=vL; vRI=vNEG
    assert a.nexp==2
else: vRI=vLS
vPK=192
AQ=192
L=a.L; assert L<NB
def vr(b,n=1): return f'v{b}' if n==1 else f'v[{b}:{b+n-1}]'
def ar(b,n=1): return f'a{b}' if n==1 else f'a[{b}:{b+n-1}]'
def sr(b,n=1): return f's{b}' if n==1 else f's[{b}:{b+n-1}]'
NKS=24//NQ
def qfrag(qb,k):
    i=qb*NKS+k
    return ar(AQ+4*i,4) if i<16 else vr(VQ+4*(i-16),4)

def tile_of(p):
    if p>=40:
        k,i,_=tile_of(p-40); return (k,i,True)
    if p<0:
        k,i,n=tile_of(p+40); assert n; return (k,i,False)
    if p<=29: return ('K',p//2+1,False) if p%2==0 else ('V',p//2,False)
    if p==30: return ('V',15,False)
    if p<=38: return ('Q',p-31,True)
    return ('K',0,True)
def posK(j): return -1 if j==0 else 2*(j-1)
def posV(j): return 30 if j==15 else 2*j+1
def grp(p): return (p//4)%3
def tig(p): return p%4

def dma_groups(p):
    kind,idx,_=tile_of(p)
    srd={'Q':SRDQ,'K':SRDK,'V':SRDV}[kind]
    vo=vDV if kind=='V' else vDK
    pol=a.qpol if kind=='Q' else a.kvpol
    setup=[I(f's_add_u32 m0, {sr(sGW[grp(p)])}, {tig(p)*TILE}'), I(f's_mov_b32 {sr(sSOF)}, {idx*TILE}')]
    if 'nodma' in ABL: return [setup]
    out=[]
    for j in range(3):
        off=f' offset:{1024*j}' if j else ''
        x=I(f'buffer_load_dwordx4 {vr(vo[j])}, {sr(srd,4)}, {sr(sSOF)} offen{off} {pol} lds',meta={'pos':p},cost=a.cdma)
        out.append((setup if j==0 else [])+[x])
    return out
def dma_tile(p): return sum(dma_groups(p),[])
def need(*ps,lgkm0=False): return I('NEED',meta={'tiles':list(ps),'lgkm0':lgkm0})
def bar(): return I('s_barrier')
def lanestamp(idx):
    if a.stamp!=2: return []
    return [I('s_memtime s[54:55]'),I('s_waitcnt lgkmcnt(0)'),I('s_sub_u32 s54, s54, s52'),
            I(f's_mul_i32 s65, {sr(sITEM)}, 21'),I(f's_add_u32 s65, s65, {idx}'),I('s_min_u32 s65, s65, 63'),
            I('s_mov_b32 s66, m0'),I('s_mov_b32 m0, s65'),I('s_nop 0'),I('v_writelane_b32 v0, s54, m0'),I('s_nop 0'),I('s_mov_b32 m0, s66')]

def prologue():
    o=[]; e=lambda t,**k:o.append(I(t,**k))
    e('s_cmp_ge_u32 s2, 256'); e('s_cbranch_scc1 L_end')
    e('s_load_dwordx4 s[4:7], s[0:1], 0'); e('s_load_dwordx4 s[8:11], s[0:1], 16')
    if a.stamp: e('s_load_dwordx2 s[60:61], s[0:1], 40')
    e('v_lshrrev_b32 v24, 6, v0'); e('v_and_b32 v25, 63, v0')
    e(f'v_readfirstlane_b32 {sr(sW)}, v24')
    e(f's_and_b32 {sr(sT0)}, s2, 7'); e(f's_lshr_b32 {sr(sT1)}, s2, 4'); e(f's_lshl_b32 {sr(sT1)}, {sr(sT1)}, 3')
    e(f's_add_u32 {sr(sT0)}, {sr(sT0)}, {sr(sT1)}'); e(f's_mul_i32 {sr(sHOFF)}, {sr(sT0)}, {HEADB}')
    e(f's_lshr_b32 {sr(sT1)}, s2, 3'); e(f's_and_b32 {sr(sT1)}, {sr(sT1)}, 1'); e(f's_mul_i32 {sr(sT2)}, {sr(sT1)}, {HALFB}')
    e(f's_lshl_b32 {sr(sT0)}, {sr(sW)}, 3')
    for j in range(3):
        e(f'v_add_u32 v26, {64*j}, v25')
        e('v_mul_u32_u24 v27, 2731, v26'); e('v_lshrrev_b32 v27, 16, v27')
        e('v_mul_u32_u24 v28, 24, v27'); e('v_sub_u32 v28, v26, v28')
        e(f'v_add_u32 v27, {sr(sT0)}, v27')
        e('v_lshrrev_b32 v29, 1, v27'); e('v_and_b32 v30, 7, v29'); e('v_xor_b32 v30, v30, v28')
        e('v_mul_u32_u24 v31, 384, v27')
        e(f'v_lshl_add_u32 {vr(vDK[j])}, v30, 4, v31'); e(f'v_subrev_u32 {vr(vDK[j])}, {1024*j}, {vr(vDK[j])}')
        if SH==32: e('v_and_b32 v30, 1, v29'); e('v_lshlrev_b32 v30, 2, v30')
        else: e('v_and_b32 v30, 3, v29'); e('v_lshlrev_b32 v30, 1, v30')
        e('v_xor_b32 v30, v30, v28')
        e(f'v_lshl_add_u32 {vr(vDV[j])}, v30, 4, v31'); e(f'v_subrev_u32 {vr(vDV[j])}, {1024*j}, {vr(vDV[j])}')
    e('s_waitcnt lgkmcnt(0)')
    e(f's_add_u32 s4, s4, {sr(sT2)}'); e('s_addc_u32 s5, s5, 0')
    e(f's_add_u32 s10, s10, {sr(sT2)}'); e('s_addc_u32 s11, s11, 0')
    for srd,ptr,n in ((SRDQ,sQP,HALFB),(SRDK,sKP,HEADB),(SRDV,sVP,HEADB),(SRDO,sOP,HALFB)):
        e(f's_add_u32 {sr(srd)}, {sr(ptr)}, {sr(sHOFF)}'); e(f's_addc_u32 {sr(srd+1)}, {sr(ptr+1)}, 0')
        e(f's_mov_b32 {sr(srd+2)}, {n}'); e(f's_mov_b32 {sr(srd+3)}, 0x20000')
    e(f's_mov_b32 {sr(SRDO+2)}, 0')
    e(f's_mul_i32 {sr(sT0)}, {sr(sW)}, 3072')
    for j in range(3):
        e(f's_mov_b32 {sr(sG[j])}, {j*GRP}'); e(f's_add_u32 {sr(sGW[j])}, {sr(sT0)}, {j*GRP}')
    for p in range(-9,3): o.extend(dma_tile(p))
    e(f's_mov_b32 {sr(sC)}, {hex(f2u(C_SCALE))}'); e(f's_mov_b32 {sr(sNC)}, {hex(f2u(-C_SCALE))}')
    e(f's_mov_b32 {sr(sTHR)}, {"0x40004000" if RS else a.thr}'); e(f's_mov_b32 {sr(sITEM)}, 0')
    if RS:
        e('v_and_b32 v26, 15, v25'); e('v_mov_b32 v27, 0x3f803f80'); e('v_cmp_eq_u32 vcc, 0, v26'); e('s_nop 1')
        for i in range(4): e(f'v_cndmask_b32 {vr(vONE+i)}, 0, v27, vcc')
        e(f's_mov_b32 {sr(sBIAS)}, {hex(f2u(-a.bias))}')
    if SH==32:
        e('v_and_b32 v26, 31, v25'); e('v_lshrrev_b32 v27, 5, v25')
        e('v_mul_u32_u24 v28, 384, v26'); e('v_bfe_u32 v29, v26, 1, 3')
        for j in range(4):
            e(f'v_add_u32 v30, {2*j}, v27'); e('v_xor_b32 v30, v30, v29'); e(f'v_lshl_add_u32 {vr(vKA[j])}, v30, 4, v28')
        e('v_and_b32 v26, 15, v25'); e('v_lshrrev_b32 v28, 2, v26'); e('v_lshl_add_u32 v28, v27, 2, v28')
        e('v_mul_u32_u24 v28, 384, v28')
        e('v_bfe_u32 v29, v25, 4, 1'); e('v_lshlrev_b32 v29, 1, v29'); e('v_bfe_u32 v30, v26, 1, 1'); e('v_add_u32 v29, v29, v30')
        e('v_lshl_add_u32 v28, v29, 4, v28'); e('v_and_b32 v30, 1, v26'); e('v_lshl_add_u32 v28, v30, 3, v28')
        e('v_bfe_u32 v30, v26, 3, 1'); e('v_lshlrev_b32 v30, 6, v30')
        e(f'v_add_u32 {vr(vVA[0])}, v28, v30'); e('v_xor_b32 v30, 64, v30'); e(f'v_add_u32 {vr(vVA[1])}, v28, v30')
        e(f's_lshl_b32 {sr(sT0)}, {sr(sW)}, 12'); e(f's_add_u32 {sr(sT0)}, {sr(sT0)}, {STG}')
        e('v_and_b32 v26, 31, v25'); e('v_lshlrev_b32 v28, 7, v26'); e('v_lshl_add_u32 v28, v27, 3, v28'); e(f'v_add_u32 v28, {sr(sT0)}, v28')
        e('v_and_b32 v29, 7, v26'); e(f'v_lshl_add_u32 {vr(vOW)}, v29, 4, v28')
    else:
        e('v_and_b32 v26, 15, v25'); e('v_lshrrev_b32 v27, 4, v25')
        e('v_mul_u32_u24 v28, 384, v26'); e('v_bfe_u32 v29, v26, 1, 3')
        for j in range(2):
            e(f'v_add_u32 v30, {4*j}, v27'); e('v_xor_b32 v30, v30, v29'); e(f'v_lshl_add_u32 {vr(vKA[j])}, v30, 4, v28')
        e('v_lshrrev_b32 v28, 2, v26'); e('v_lshl_add_u32 v28, v27, 2, v28')
        e('v_bfe_u32 v29, v28, 1, 2'); e('v_lshlrev_b32 v29, 1, v29')
        e('v_mul_u32_u24 v28, 384, v28')
        e('v_bfe_u32 v30, v26, 1, 1'); e('v_lshl_add_u32 v28, v30, 4, v28')
        e('v_and_b32 v30, 1, v26'); e('v_lshl_add_u32 v28, v30, 3, v28')
        for j in range(4):
            e(f'v_xor_b32 v30, {2*j}, v29'); e(f'v_lshl_add_u32 {vr(vVA[j])}, v30, 4, v28')
        e(f's_lshl_b32 {sr(sT0)}, {sr(sW)}, 12'); e(f's_add_u32 {sr(sT0)}, {sr(sT0)}, {STG}')
        e('v_lshlrev_b32 v28, 7, v26'); e('v_and_b32 v30, 1, v27'); e('v_lshl_add_u32 v28, v30, 3, v28'); e(f'v_add_u32 v28, {sr(sT0)}, v28')
        e('v_and_b32 v29, 7, v26'); e('v_lshrrev_b32 v30, 1, v27'); e('v_xor_b32 v29, v29, v30'); e(f'v_lshl_add_u32 {vr(vOW)}, v29, 4, v28')
    e('v_lshrrev_b32 v26, 3, v25'); e('v_and_b32 v28, 7, v25'); e('v_xor_b32 v29, v28, v26')
    e('v_lshlrev_b32 v30, 7, v26'); e('v_lshl_add_u32 v30, v29, 4, v30'); e(f'v_add_u32 {vr(vOR)}, {sr(sT0)}, v30')
    e(f's_lshl_b32 {sr(sT1)}, {sr(sW)}, 6'); e(f'v_add_u32 v26, {sr(sT1)}, v26'); e('v_mul_u32_u24 v26, 384, v26')
    e(f'v_lshl_add_u32 {vr(vOG)}, v28, 4, v26')
    for j in range(2):
        e(f's_lshl_b32 {sr(sT0)}, {sr(sW)}, 1'); e(f's_add_u32 {sr(sT0)}, {sr(sT0)}, {(31+j)%12}')
        e(f's_cmp_ge_u32 {sr(sT0)}, 12'); e(f's_cselect_b32 {sr(sT1)}, 12, 0'); e(f's_sub_u32 {sr(sT0)}, {sr(sT0)}, {sr(sT1)}')
        e(f's_mul_i32 {sr(sQS[j])}, {sr(sT0)}, {TILE}')
    if a.stamp:
        e(f's_mov_b32 s62, 0x1000000'); e('s_mov_b32 s63, 0x20000')
        e('s_memtime s[52:53]'); e('s_memrealtime s[56:57]'); e('s_waitcnt lgkmcnt(0)')
    return o

def move_addr(regs,frm,to):
    if frm==to: return []
    return [I(f's_sub_u32 {sr(sD)}, {sr(sG[to])}, {sr(sG[frm])}')]+[I(f'v_add_u32 {vr(r)}, {sr(sD)}, {vr(r)}') for r in regs]

def q_addr(first):
    o=[]; e=lambda t,**k:o.append(I(t,**k))
    cur=0 if first else 1
    for j in range(2):
        if first: e(f's_add_u32 {sr(sT0)}, {sr(sQS[j])}, {2*GRP}')
        else: e(f's_add_u32 {sr(sT0)}, {sr(sQS[j])}, {sr(sG[0])}')
        e(f's_cmp_ge_u32 {sr(sT0)}, {RING}'); e(f's_cselect_b32 {sr(sT1)}, {RING}, 0'); e(f's_sub_u32 {sr(sT0)}, {sr(sT0)}, {sr(sT1)}')
        e(f's_sub_u32 {sr(sT0)}, {sr(sT0)}, {sr(sG[cur])}')
        for i,r in enumerate(vKA): e(f'v_add_u32 {vr(vT[j*NKA+i])}, {sr(sT0)}, {vr(r)}')
    return o
def q_reads():
    o=[]
    for qb in range(NQ):
        for k in range(NKS):
            if SH==32: adr=vT[qb*4+(k&3)]; off=(k>>2)*128
            else: adr=vT[(qb>>1)*2+(k&1)]; off=(qb&1)*16*384+(k>>1)*128
            o.append(I(f'ds_read_b128 {qfrag(qb,k)}, {vr(adr)} offset:{off}',cost=a.cds))
    return o
def q_first():
    return [need(*range(-9,-1),lgkm0=True),bar()]+q_addr(True)+q_reads()+[need(lgkm0=True),bar()]+dma_tile(3)

def chunk_blocks(ci):
    hi,dp=divmod(ci,3)
    if SH==32: return [(hi*96+dp*32+4*c,hi) for c in range(8)]
    return [((2*hi+(c>>2))*48+(4*dp+(c&3))*4, 2*hi+(c>>2)) for c in range(8)]
def stage_write(c,pk,cost=None):
    if SH==32: x,off=c<<4,0
    else: x,off=(c&3)<<5,(c>>2)*2048
    o=[]
    adr=vOW
    if x:
        adr=vOX[c&1]; o.append(I(f'v_xor_b32 {vr(adr)}, {x}, {vr(vOW)}'))
    o.append(I(f'ds_write_b64 {vr(adr)}, {vr(pk+2*c,2)} offset:{off}',cost=cost))
    return o
def o_store(reg,ci,i,cost=None):
    hi,dp=divmod(ci,3)
    r=[I(f's_mov_b32 {sr(sSO2)}, {(32*hi+8*i)*384+dp*128}')]
    if 'nost' not in ABL:
        r.append(I(f'buffer_store_dwordx4 {vr(reg,4)}, {vr(vOG)}, {sr(SRDO,4)}, {sr(sSO2)} offen {a.opol}',cost=cost))
    return r

def xlane(op,regs,tmps):
    o=[]
    swaps=['v_permlane32_swap_b32'] if SH==32 else ['v_permlane16_swap_b32','v_permlane32_swap_b32']
    for sw in swaps:
        for r,t in zip(regs,tmps): o.append(I(f'v_mov_b32 {vr(t)}, {vr(r)}'))
        if len(regs)<3: o.append(I('s_nop 1' if len(regs)==1 else 's_nop 0'))
        for r,t in zip(regs,tmps): o.append(I(f'{sw} {vr(t)}, {vr(r)}'))
        for r,t in zip(regs,tmps): o.append(I(f'{op} {vr(r)}, {vr(t)}, {vr(r)}'))
    return o
def sreg(buf,qb,r):
    return vS[buf]+qb*EPQ+r
def max_tree(dst,regs):
    o=[I(f'v_max3_f32 {vr(dst)}, {vr(regs[0])}, {vr(regs[1])}, {vr(regs[2])}')]
    i=3
    while i+1<len(regs):
        o.append(I(f'v_max3_f32 {vr(dst)}, {vr(dst)}, {vr(regs[i])}, {vr(regs[i+1])}')); i+=2
    if i<len(regs): o.append(I(f'v_max_f32 {vr(dst)}, {vr(dst)}, {vr(regs[i])}'))
    return o

class Gap:
    def __init__(s): s.mfma=None; s.head=[]; s.must=[]; s.fill=[]; s.tail=[]
def vcost(l): return sum(i.cost for i in l if i.kind in('valu','trans','dsr','dsw','dma','vst'))

def build_item():
    PB=PH+NRS
    NG=PH*16+PB*16
    G=[Gap() for _ in range(NG)]
    def gA(t,i): return (PH+(PH+PB)*t+i) if t>=0 else i
    def gB(t,i): return (PH+(PH+PB)*t+PH+i) if t<15 else (PH+(PH+PB)*15+i)
    frags=[]; fgap=[]
    for t in range(-1,16):
        if t<=14:
            buf=(t+1)&1
            for f in range(12):
                phi=len(frags); fb=vF+4*(phi%NB); frags.append(('K',t+1,f)); fgap.append(gA(t,GPF*f))
                for qb in range(NQ):
                    if SH==32: k=f; d=vr(vS[buf]+16*qb,16); first=(k==0)
                    else:
                        k,kb=divmod(f,2); d=vr(vS[buf]+8*qb+4*kb,4); first=(k==0)
                    G[gA(t,GPF*f+qb)].mfma=I(f'{MF} {d}, {vr(fb,4)}, {qfrag(qb,k)}, {"0" if first else d}')
        if t>=0:
            pb=vP[t&1]
            for qb in range(NRS):
                d=vr(vL[qb],4)
                G[gB(t,qb)].mfma=I(f'{MF} {d}, {vr(vONE,4)}, {vr(pb+4*qb,4)}, {"0" if t==0 else d}')
            for f in range(12):
                phi=len(frags); fb=vF+4*(phi%NB); frags.append(('V',t,f)); fgap.append(gB(t,NRS+GPF*f))
                for qb in range(NQ):
                    if SH==32:
                        u,db=divmod(f,6); d=ar(qb*96+db*16,16); p=vr(pb+8*qb+4*u,4); first=(t==0 and u==0)
                    else:
                        d=ar(qb*48+f*4,4); p=vr(pb+4*qb,4); first=(t==0)
                    G[gB(t,NRS+GPF*f+qb)].mfma=I(f'{MF} {d}, {vr(fb,4)}, {p}, {"0" if first else d}')
    assert len(frags)==384
    pre=[]
    cur={'K':0,'V':0}
    def reads(phi):
        kind,ti,fi=frags[phi]; fb=vF+4*(phi%NB)
        p=posK(ti) if kind=='K' else posV(ti)
        adr=move_addr(vKA if kind=='K' else vVA,cur[kind],grp(p)); cur[kind]=grp(p)
        base=tig(p)*TILE
        if kind=='K':
            if SH==32: r=[I(f'ds_read_b128 {vr(fb,4)}, {vr(vKA[fi&3])} offset:{base+(fi>>2)*128}',cost=a.cds)]
            else:
                ks,kb=divmod(fi,2)
                r=[I(f'ds_read_b128 {vr(fb,4)}, {vr(vKA[ks&1])} offset:{base+kb*16*384+(ks>>1)*128}',cost=a.cds)]
        else:
            if SH==32:
                u,db=divmod(fi,6)
                r=[I(f'ds_read_b64_tr_b16 {vr(fb+2*jj,2)}, {vr(vVA[db&1])} offset:{base+(16*u+8*jj)*384+(db>>1)*128}',cost=a.cds) for jj in range(2)]
            else:
                r=[I(f'ds_read_b64_tr_b16 {vr(fb+2*jj,2)}, {vr(vVA[fi&3])} offset:{base+16*jj*384+(fi>>2)*128}',cost=a.cds) for jj in range(2)]
        return adr,r
    for phi in range(384):
        adr,r=reads(phi)
        if 'nolds' in ABL: r=[]
        if phi<L: pre+=adr+r
        else:
            g=fgap[phi-L]
            if adr:
                sc,va=adr[0],adr[1:]
                n=len(va)
                for i,x in enumerate(va):
                    gg=g-n+i if SH==16 else g-1
                    if i==0 or SH==32 and False: pass
                    G[gg].must+=([sc] if i==0 else [])+[x]
            if r: G[g].must.append(r[0])
            if len(r)>1: G[g+1].must.append(r[1])
        if phi>0 and 'nolds' not in ABL:
            G[fgap[phi]-1].head.append(I(f'TOUCH {vr(vF+4*(phi%NB),4)}'))
    assert cur['K']==1 and cur['V']==1
    def place_even(groups,g0,g1):
        n=len(groups)
        for i,gr in enumerate(groups):
            g=g0+(i*(g1-g0))//max(n,1)
            best=g
            for d in range(0,GPF):
                if g+d<g1 and vcost(G[g+d].must)==0: best=g+d; break
            G[best].must+=gr
    defer={}
    slots=([1] if a.nexp==1 else [])+[2,3,4,5]
    S=GPF//2
    for n,ci in enumerate(slots):
        s0=a.ostep0+a.ostepn*n
        assert s0+(2 if a.wspread else 1)<=14
        if ci==1 and a.nexp==1:
            rb=vRB
            rd=lambda i:I(f'ds_read_b128 {vr(rb+4*(i&1),4)}, {vr(vOR)} offset:{i*1024}',cost=a.cds)
            G[gA(s0,3*S)].must.append(rd(0)); G[gA(s0,5*S)].must.append(rd(1))
            defer.setdefault(s0,[]).extend([o_store(rb,ci,0,a.cdma)+[I('s_nop 0'),rd(2)],o_store(rb+4,ci,1,a.cdma)+[I('s_nop 0'),rd(3)]])
            defer.setdefault(s0+1,[]).extend([o_store(rb,ci,2,a.cdma),o_store(rb+4,ci,3,a.cdma)])
        else:
            pk=vPK+16*(ci-2)
            two=a.ostepn>=2 and a.wspread
            for c in range(8):
                w=stage_write(c,pk,a.cdw)
                if two: g=gA(s0+(c>>2),(2+5*(c&3))*S+1)
                else: g=gA(s0,(1+2*c)*S)
                if len(w)==2 and SH==16: G[g-1].must.append(w[0]); G[g].must.append(w[1])
                else: G[g].must+=w
            sr_=s0+1 if two else s0
            for i in range(4):
                G[gA(sr_,(19+i)*S+(1 if SH==16 else 0))].must.append(I(f'ds_read_b128 {vr(pk+4*i,4)}, {vr(vOR)} offset:{i*1024}',cost=a.cds))
            defer.setdefault(sr_,[]).extend([o_store(pk,ci,0,a.cdma),o_store(pk+4,ci,1,a.cdma)])
            defer.setdefault(sr_+1,[]).extend([o_store(pk+8,ci,2,a.cdma),o_store(pk+12,ci,3,a.cdma)])
    def place_bar(g,needs,ps,gend,st,idx):
        G[g].head=G[g].head+[need(*needs),bar()]+lanestamp(idx)
        gr=sum((dma_groups(p) for p in ps),[])
        ex=defer.get(st,[])
        allg=[]; k=0
        for i,x in enumerate(gr):
            allg.append(x)
            if ex and k<len(ex) and (i+1)*len(ex)>=(k+1)*len(gr): allg.append(ex[k]); k+=1
        allg+=ex[k:]
        place_even(allg,g+1,gend)
    sched={-1:[5],0:[6,7,8],1:[9,10,11],2:[12,13,14],3:[15,16,17],4:[18,19,20]}
    for t in range(5,15): sched[t]=[2*t+11,2*t+12]
    place_even(dma_groups(4),2*S,20*S)
    place_bar(gA(0,1*S),[posV(0)],sched[-1],gA(0,20*S),-1,2)
    bp=int(a.bpos*PH)
    for t in range(0,15):
        needs=[posV(t+1)]+([posK(t+2)] if t<=13 else [])
        g=gB(t,bp)
        span=int((a.span if t<12 else a.spanq)*(PH+PB))
        gend=min(g+1+span, gB(14,PB-1)+1 if t==14 else 10**9)
        place_bar(g,needs,sched[t],gend,t,3+t)
    grpS=[I(f's_add_u32 {sr(sNOFF)}, {sr(sHOFF)}, {ITEMSTEP}'),I(f's_cmp_lt_u32 {sr(sITEM)}, 3'),
          I(f's_cselect_b32 {sr(sNOFF)}, {sr(sNOFF)}, 0'),I(f's_cselect_b32 {sr(sNQ)}, {HALFB}, 0'),I(f's_cselect_b32 {sr(sNK)}, {HEADB}, 0')]
    def mv(srd,ptr,off,n=None):
        o=[I(f's_add_u32 {sr(srd)}, {sr(ptr)}, {sr(off)}'),I(f's_addc_u32 {sr(srd+1)}, {sr(ptr+1)}, 0')]
        if n is not None: o.append(I(f's_mov_b32 {sr(srd+2)}, {sr(n)}'))
        return o
    def place_scalar(ins,g):
        for x in ins:
            while any(('scc' in y.wr or 'scc' in y.rd) for y in G[g].must+G[g].head) : g+=1
            G[g].must.insert(0,x); g+=1
        return g
    def scc_safe_block(ins,g): G[g].must+=ins
    scc_safe_block(grpS,gA(5,3*S)); scc_safe_block(mv(SRDQ,sQP,sNOFF,sNQ),gA(6,9*S))
    scc_safe_block(mv(SRDK,sKP,sNOFF,sNK),gA(11,5*S))
    scc_safe_block(mv(SRDV,sVP,sNOFF,sNK),gA(12,5*S))
    NT=len(vT)
    def sm_ops(t):
        buf=t&1; pb=vP[buf]; ops=[]; idx={}
        def add(key,ins,deps,late=()):
            idx[key]=len(ops); ops.append({'ins':ins,'deps':list(deps),'late':list(late),'key':key})
        nor=0
        for e in range(32):
            qb,r=divmod(e,EPQ); T=vr(vT[e%NT]); Tp=vr(vT[(e-1)%NT])
            war=[('A',e-NT),('C',(e-NT)|1),('A',(e-NT)|1)] if e>=NT else []
            add(('F',e),I(f'v_fma_f32 {T}, {vr(sreg(buf,qb,r))}, {sr(sC)}, {vr(vNEG[qb])}'),war)
            add(('X',e),I(f'v_exp_f32 {T}, {T}'),[('F',e)])
            if not RS:
                if r==1: add(('A',e),I(f'v_add_f32 {vr(vTS[qb])}, {Tp}, {T}'),[],[('X',e),('X',e-1)])
                elif r>1: add(('A',e),I(f'v_add_f32 {vr(vTS[qb])}, {vr(vTS[qb])}, {T}'),[('A',e-1)],[('X',e)])
            if r&1:
                add(('C',e),I(f'v_cvt_pk_bf16_f32 {vr(pb+(EPQ//2)*qb+(r>>1))}, {Tp}, {T}'),[],[('X',e),('X',e-1)])
                if RS and t>0:
                    j=e>>1
                    m=vr(vTM[0])
                    if j==2: add(('O',j),I(f'v_or3_b32 {m}, {vr(pb)}, {vr(pb+1)}, {vr(pb+2)}'),[('C',1),('C',3),('C',5)])
                    elif j>2 and j%2==0: add(('O',j),I(f'v_or3_b32 {m}, {m}, {vr(pb+j-1)}, {vr(pb+j)}'),[('O',j-2),('C',e-2),('C',e)])
                    elif j==15: add(('O',j),I(f'v_or_b32 {m}, {m}, {vr(pb+15)}'),[('O',14),('C',e)])
        for o in ops:
            o['deps']=[idx[d] for d in o['deps'] if d in idx]; o['late']=[idx[d] for d in o['late'] if d in idx]
        if 'nosm' in ABL: return []
        return ops
    def schedule(ops,gaps):
        tot=sum(o['ins'].cost for o in ops)
        caps=[max(0,VB-vcost(G[g].must)) for g in gaps]; ctot=sum(caps)
        placed={}; done=0; cum=0.0; order=0
        rem=list(range(len(ops)))
        for gi,g in enumerate(gaps):
            b=caps[gi]; cum+=caps[gi]*min(1.0,tot/ctot) if tot<=ctot else caps[gi]
            while rem:
                pick=None
                for j in rem[:10]:
                    o=ops[j]
                    if o['ins'].cost>b: continue
                    if any(d not in placed for d in o['deps']): continue
                    if any((d not in placed) or placed[d]>=gi for d in o['late']): continue
                    pick=j; break
                if pick is None or done+ops[pick]['ins'].cost>cum+a.slack: break
                G[g].fill.append(ops[pick]['ins']); placed[pick]=gi; b-=ops[pick]['ins'].cost; done+=ops[pick]['ins'].cost; rem.remove(pick)
        left=[ops[j]['ins'] for j in rem]
        return left
    tramp=[]
    def check(t):
        if RS:
            if t==0 or 'nochk' in ABL: return [],[],[]
            tramp.append(t)
            return ([I(f'v_and_b32 {vr(vTM[0])}, {sr(sTHR)}, {vr(vTM[0])}'),I(f'v_cmp_ne_u32 vcc, 0, {vr(vTM[0])}')],
                    [I(f's_cbranch_vccnz L_tr{t}'),I(f'L_bk{t}:')],[])
        if t==0: return [],[],[I(f'v_mov_b32 {vr(vLS[qb])}, {vr(vTS[qb])}') for qb in range(NQ)]
        c=[];b=[]
        if 'nochk' not in ABL:
            if NQ==2: c.append(I(f'v_max_f32 {vr(vTM[0])}, {vr(vTS[0])}, {vr(vTS[1])}'))
            else:
                c.append(I(f'v_max3_f32 {vr(vTM[0])}, {vr(vTS[0])}, {vr(vTS[1])}, {vr(vTS[2])}'))
                c.append(I(f'v_max_f32 {vr(vTM[0])}, {vr(vTM[0])}, {vr(vTS[3])}'))
            c.append(I(f'v_cmp_lt_f32 vcc, {sr(sTHR)}, {vr(vTM[0])}'))
            b=[I(f's_cbranch_vccnz L_tr{t}'),I(f'L_bk{t}:')]
            tramp.append(t)
        return c,b,[I(f'v_add_f32 {vr(vLS[qb])}, {vr(vLS[qb])}, {vr(vTS[qb])}') for qb in range(NQ)]
    nleft=[]
    for t in range(0,16):
        if t==0: gaps=[gA(0,i) for i in range(2*S,PH-WEND)]
        elif t<15: gaps=[gB(t-1,i) for i in range(W0,PB)]+[gA(t,i) for i in range(0,PH-WEND)]
        else: gaps=[gB(14,i) for i in range(W0,PB)]
        left=schedule(sm_ops(t),gaps)
        nleft.append(len(left))
        c,b,u=check(t)
        if t<15:
            G[gA(t,PH-WEND-1)].tail+=left
            if SH==16:
                for i,x in enumerate(c): G[gA(t,min(PH-1,PH-WEND+i//2))].tail.append(x)
                G[gA(t,PH-1)].tail+=b
                for i,x in enumerate(u): G[gB(t,i)].fill.insert(0,x)
            else: G[gA(t,PH-1)].tail+=c+b+u
        else: G[gB(14,PB-1)].tail+=left+c+b+u
    print('softmax ops left over per tile:',nleft,file=sys.stderr)
    x0=[]
    vMX=vTS[:NQ] if not RS else [vP[1]+i for i in range(NQ)]
    trees=[max_tree(vMX[qb],[sreg(0,qb,r) for r in range(EPQ)]) for qb in range(NQ)]
    for grp_ in zip(*trees): x0+=list(grp_)
    x0+=xlane('v_max_f32',vMX,vT[:NQ])
    for qb in range(NQ):
        if RS: x0.append(I(f'v_mov_b32 {vr(vNEG[qb])}, {sr(sBIAS)}'))
    for qb in range(NQ):
        if RS: x0.append(I(f'v_fmac_f32 {vr(vNEG[qb])}, {sr(sNC)}, {vr(vMX[qb])}'))
        else: x0.append(I(f'v_mul_f32 {vr(vNEG[qb])}, {sr(sNC)}, {vr(vMX[qb])}'))
    body=[I('L_item:'),need(posK(0),posK(1)),bar()]+lanestamp(0)+pre+[I(f'TOUCH {vr(vF,4)}')]
    for g in range(NG):
        gp=G[g]
        body.append(gp.mfma)
        body+=gp.head+gp.must+gp.fill+gp.tail
        if g==PH-1: body+=x0
    return body,tramp

def chunk_conv(ci,x,pk):
    blk=chunk_blocks(ci)
    rd=[[I(f'v_accvgpr_read_b32 {vr(x+4*c+i)}, {ar(blk[c][0]+i)}') for i in range(4)] for c in range(8)]
    if a.pkmul:
        ml=[[I(f'v_pk_mul_f32 {vr(x+4*c+2*i,2)}, {vr(x+4*c+2*i,2)}, {vr(vRI[blk[c][1]]&~1,2)} op_sel:[0,{blk[c][1]&1}] op_sel_hi:[1,{blk[c][1]&1}]') for i in range(2)] for c in range(8)]
    else:
        ml=[[I(f'v_mul_f32 {vr(x+4*c+i)}, {vr(x+4*c+i)}, {vr(vRI[blk[c][1]])}') for i in range(4)] for c in range(8)]
    cv=[[I(f'v_cvt_pk_bf16_f32 {vr(pk+2*c+i)}, {vr(x+4*c+2*i)}, {vr(x+4*c+2*i+1)}') for i in range(2)] for c in range(8)]
    return rd,ml,cv
def boundary():
    main=[]; e=lambda t,**k:main.append(I(t,**k))
    extra={}
    def at(i,ins): extra.setdefault(i,[]).extend(ins)
    main+=xlane('v_add_f32',vLS[:NQ],vTS[:NQ] if not RS else vT[:NQ])
    for qb in range(NQ): e(f'v_rcp_f32 {vr(vRI[qb])}, {vr(vLS[qb])}')
    X=[vS[0],vS[1]]; marks={}
    for ci in range(6):
        x=X[ci&1]; staged=ci<2
        pk=vP[0] if staged else vPK+16*(ci-2)
        rd,ml,cv=chunk_conv(ci,x,pk)
        for c in range(10):
            if c<8: main.extend(rd[c])
            if 1<=c<=8: main.extend(ml[c-1])
            if c>=2:
                main.extend(cv[c-2])
                if staged: main.extend(stage_write(c-2,pk))
        if staged and (ci==0 or a.nexp==2):
            for i in range(4): main.append(I(f'ds_read_b128 {vr(vP[1]+4*i,4)}, {vr(vOR)} offset:{i*1024}'))
            marks[ci]=len(main)
    n=len(main)
    head=[I(f's_add_u32 {sr(SRDO)}, {sr(sOP)}, {sr(sHOFF)}'),I(f's_addc_u32 {sr(SRDO+1)}, {sr(sOP+1)}, 0'),I(f's_mov_b32 {sr(SRDO+2)}, {HALFB}'),
          need(lgkm0=True),bar()]+lanestamp(18)
    for j,gr in enumerate(dma_groups(41)): at(a.e41+a.edsp*j,gr)
    for j,gr in enumerate(dma_groups(42)): at(a.e41+a.edsp*(3+j),gr)
    for ci in range(a.nexp):
        for i in range(4): at(marks[ci]+16+12*i,o_store(vP[1]+4*i,ci,i))
    q0=a.eq0
    at(q0,[need(*range(31,39)),bar()]+lanestamp(19)+q_addr(False))
    for i,r in enumerate(q_reads()): at(q0+1+a.eqsp*i,[r])
    q1=q0+1+a.eqsp*24+a.eqw
    at(q1,[need(lgkm0=True),bar()]+lanestamp(20))
    for j,gr in enumerate(dma_groups(43)): at(q1+1+a.edsp*j,gr)
    out=list(head)
    for i in range(max(n,max(extra)+1)):
        out+=extra.get(i,[])
        if i<n: out.append(main[i])
    return out
def final_drain():
    o=[]
    R=[vS[0],vS[0]+16,vS[1],vS[1]+16]
    if a.nexp==1:
        for i in range(4): o.append(I(f'ds_read_b128 {vr(R[0]+4*i,4)}, {vr(vOR)} offset:{i*1024}'))
    pend=[(R[0],1)] if a.nexp==1 else []
    for n,ci in enumerate((2,3,4,5)):
        pk=vPK+16*(ci-2)
        for c in range(8): o+=stage_write(c,pk)
        for (r,cj) in pend:
            for i in range(4): o+=o_store(r+4*i,cj,i)
        r=R[(n+1)%4]
        for i in range(4): o.append(I(f'ds_read_b128 {vr(r+4*i,4)}, {vr(vOR)} offset:{i*1024}'))
        pend=[(r,ci)]
    for (r,cj) in pend:
        for i in range(4): o+=o_store(r+4*i,cj,i)
    return o
def rotate():
    o=[]; e=lambda t:o.append(I(t))
    for arr in (sG,sGW):
        e(f's_mov_b32 {sr(sT0)}, {sr(arr[0])}'); e(f's_mov_b32 {sr(arr[0])}, {sr(arr[1])}')
        e(f's_mov_b32 {sr(arr[1])}, {sr(arr[2])}'); e(f's_mov_b32 {sr(arr[2])}, {sr(sT0)}')
    e(f's_add_u32 {sr(sHOFF)}, {sr(sHOFF)}, {ITEMSTEP}')
    e(f's_add_u32 {sr(sITEM)}, {sr(sITEM)}, 1')
    return o

def rare(par):
    o=[]; e=o.append
    pb=vP[par]
    e(f'L_rare{par}:'); e('s_nop 15'); e('s_nop 3')
    m=vTM[0]; t=vTM[1]
    for qb in range(NQ):
        o+=[x.text for x in max_tree(m,[sreg(par,qb,r) for r in range(EPQ)])]
        for sw in (['v_permlane32_swap_b32'] if SH==32 else ['v_permlane16_swap_b32','v_permlane32_swap_b32']):
            e(f'v_mov_b32 {vr(t)}, {vr(m)}'); e('s_nop 1'); e(f'{sw} {vr(t)}, {vr(m)}'); e('s_nop 1'); e(f'v_max_f32 {vr(m)}, {vr(t)}, {vr(m)}')
        if RS:
            e(f'v_mov_b32 {vr(t)}, {sr(sBIAS)}'); e(f'v_fma_f32 {vr(m)}, {sr(sNC)}, {vr(m)}, {vr(t)}')
        else: e(f'v_mul_f32 {vr(m)}, {sr(sNC)}, {vr(m)}')
        e(f'v_min_f32 {vr(m)}, {vr(m)}, {vr(vNEG[qb])}')
        e(f'v_sub_f32 {vr(t)}, {vr(m)}, {vr(vNEG[qb])}')
        e(f'v_exp_f32 {vr(t)}, {vr(t)}'); e(f'v_mov_b32 {vr(vNEG[qb])}, {vr(m)}')
        e(f'v_mul_f32 {vr(vLS[qb])}, {vr(vLS[qb])}, {vr(t)}')
        for i in range(OPQ):
            x=vr(vT[i%4])
            e(f'v_accvgpr_read_b32 {x}, {ar(qb*OPQ+i)}'); e(f'v_mul_f32 {x}, {x}, {vr(t)}'); e(f'v_accvgpr_write_b32 {ar(qb*OPQ+i)}, {x}')
        for r in range(0,EPQ,2):
            x,y=vr(vT[0]),vr(vT[1])
            e(f'v_fma_f32 {x}, {vr(sreg(par,qb,r))}, {sr(sC)}, {vr(vNEG[qb])}'); e(f'v_fma_f32 {y}, {vr(sreg(par,qb,r+1))}, {sr(sC)}, {vr(vNEG[qb])}')
            e(f'v_exp_f32 {x}, {x}'); e(f'v_exp_f32 {y}, {y}'); e('s_nop 0')
            e(f'v_cvt_pk_bf16_f32 {vr(pb+(EPQ//2)*qb+(r>>1))}, {x}, {y}')
            if RS: continue
            if r==0: e(f'v_add_f32 {vr(vTS[qb])}, {x}, {y}')
            else:
                e(f'v_add_f32 {vr(vTS[qb])}, {vr(vTS[qb])}, {x}'); e(f'v_add_f32 {vr(vTS[qb])}, {vr(vTS[qb])}, {y}')
    e('s_nop 3'); e(f's_setpc_b64 {sr(sRET,2)}')
    return o

def stamp(slot):
    o=[]
    if a.stamp!=1: return o
    e=lambda t:o.append(I(t))
    e('s_memtime s[54:55]'); e('s_waitcnt lgkmcnt(0)'); e('s_sub_u32 s54, s54, s52')
    e(f's_lshl_b32 s64, s2, 2'); e(f's_add_u32 s64, s64, {sr(sW)}'); e('s_lshl_b32 s64, s64, 8')
    e(f's_lshl_b32 s65, {sr(sITEM)}, 5'); e('s_add_u32 s64, s64, s65'); e(f's_add_u32 s64, s64, {slot*4}')
    e(f'v_mov_b32 {vr(vOX[0])}, s54'); e(f'v_mov_b32 {vr(vOX[1])}, s64')
    o.append(I(f'buffer_store_dword {vr(vOX[0])}, {vr(vOX[1])}, s[60:63], 0 offen'))
    return o

pro=prologue()
qs0=q_first()
item,tramp=build_item()
bound=boundary()
rot=rotate()
loopend=[I(f's_cmp_lt_u32 {sr(sITEM)}, 4'),I('s_cbranch_scc1 L_item')]
fin=final_drain()
if a.stamp:
    if a.stamp==1:
        item=item[:3]+stamp(0)+item[3:]+stamp(1)
        bound=bound+stamp(2)
    fin+= [I('s_memtime s[54:55]'),I('s_memrealtime s[58:59]'),I('s_waitcnt lgkmcnt(0)'),I('s_sub_u32 s54, s54, s52'),I('s_sub_u32 s58, s58, s56'),
         I('s_lshl_b32 s64, s2, 2'),I(f's_add_u32 s64, s64, {sr(sW)}'),I('s_lshl_b32 s64, s64, 8'),I('s_add_u32 s64, s64, 128'),
         I('v_mov_b32 v252, s54'),I('v_mov_b32 v253, s58'),I('v_mov_b32 v255, s64'),I('buffer_store_dwordx2 v[252:253], v255, s[60:63], 0 offen')]
    if a.stamp==2:
        fin+=[I('s_lshl_b32 s64, s2, 2'),I(f's_add_u32 s64, s64, {sr(sW)}'),I('s_lshl_b32 s64, s64, 8'),I('s_add_u32 s64, s64, 0x100000'),
              I('v_mbcnt_lo_u32_b32 v254, -1, 0'),I('v_mbcnt_hi_u32_b32 v254, -1, v254'),I('v_lshlrev_b32 v254, 2, v254'),I('v_add_u32 v254, s64, v254'),
              I('buffer_store_dword v0, v254, s[60:63], 0 offen')]
body=item+bound+rot+loopend
def trace():
    for x in pro: yield x,0
    for x in qs0: yield x,0
    for it in range(4):
        for x in body: yield x,40*it
    for x in fin: yield x,160
insert_waits(trace)
nf=check_hazards(trace,verbose=False)
insert_waits(trace)
nf+=check_hazards(trace)
print('nops inserted:',nf,file=sys.stderr)
lines=[]
for x in pro+qs0+body+fin: lines+=materialize(x)
lines.append('L_end:'); lines.append('s_endpgm')
for t in tramp:
    lines+=[f'L_tr{t}:',f's_call_b64 {sr(sRET,2)}, L_rare{t&1}',f's_branch L_bk{t}']
if tramp: lines+=rare(0)+rare(1)
txt='\n'.join(lines)
hdr=open('standalone__gqa_softmax__near_ridge.s.ref').read().split('; Override launch')[0]
hdr+='; Persistent kernel: 256 workgroups x 4 waves; a workgroup owns 256 query rows of a head per item, 4 items each.\n'
if a.final:
    open(a.out,'w').write(asmlib.wrap(NAME,txt,vgpr=512,accum=256,sgpr=102,grid=256,block=256,lds=163840,meta=False,header=hdr))
else:
    asmlib.build(NAME,txt,a.out,vgpr=512,accum=256,sgpr=102,grid=256,block=256,lds=163840)
print('instructions:',sum(1 for l in lines if not l.endswith(':')),file=sys.stderr)
```

```python
import argparse, sys, math, struct
from ir import *
import asmlib

ap=argparse.ArgumentParser()
A=ap.add_argument
A('--out',default='attn')
A('--final',type=int,default=0)
A('--shape',type=int,default=16)
A('--L',type=int,default=3)
A('--bpos',type=float,default=0.25)
A('--w0',type=int,default=-1)
A('--wend',type=int,default=-1)
A('--qpol',default='sc1 nt'); A('--kvpol',default='nt'); A('--opol',default='sc1 nt')
A('--thr',default='0x4b800000')
A('--stamp',type=int,default=0)
A('--abl',default='')
A('--pkmul',type=int,default=1)
A('--cdma',type=int,default=4)
A('--cds',type=int,default=4)
A('--cdw',type=int,default=8)
A('--vb',type=int,default=-1)
A('--span',type=float,default=0.92)
A('--spanq',type=float,default=0.6)
A('--e41',type=int,default=10); A('--edsp',type=int,default=30); A('--eq0',type=int,default=130); A('--eqsp',type=int,default=5); A('--eqw',type=int,default=20)
A('--nexp',type=int,default=2)
A('--ostep0',type=int,default=5); A('--ostepn',type=int,default=2)
A('--slack',type=int,default=4)
A('--tt',type=int,default=1)
A('--cu0',type=int,default=0)
A('--e41b',type=int,default=1)
A('--wsp',type=int,default=8)
A('--qsp',type=int,default=1)
A('--w0a',type=int,default=3)
A('--bq1',type=int,default=26)
A('--nqin',type=int,default=16)
A('--xdsp',type=int,default=30)
A('--x41',type=int,default=8)
A('--bara',type=int,default=2)
A('--align',type=int,default=1)
A('--pace',type=float,default=1.0)
A('--padnop',type=int,default=0)
A('--e64',type=int,default=0)
A('--wspread',type=int,default=1)
A('--rs',type=int,default=-1)
A('--bias',type=float,default=20.0)
a=ap.parse_args()
ABL=set(a.abl.split(',')) if a.abl else set()
SH=a.shape
NQ=2 if SH==32 else 4
GPF=NQ
PH=12*GPF
VB=a.vb if a.vb>0 else (24 if SH==32 else 8)
W0=a.w0 if a.w0>=0 else 2
WEND=a.wend if a.wend>=0 else (1 if SH==32 else 2)
MF='v_mfma_f32_32x32x16_bf16' if SH==32 else 'v_mfma_f32_16x16x32_bf16'
RS=(a.rs if a.rs>=0 else (1 if SH==16 else 0))
assert not (RS and SH==32)
NRS=4 if RS else 0
EPQ=32//NQ
OPQ=192//NQ

NAME='standalone__gqa_softmax__near_ridge_kernel'
HEADB=512*384; HALFB=HEADB//2; TILE=12288; GRP=4*TILE; RING=12*TILE
STG=RING
ITEMSTEP=128*HEADB
def f2u(x): return struct.unpack('<I',struct.pack('<f',x))[0]
C_SCALE=math.log2(math.e)/math.sqrt(192.0)

sW=3
sQP,sKP,sVP,sOP=4,6,8,10
SRDQ,SRDK,SRDV,SRDO=12,16,20,24
sC,sTHR,sITEM,sHOFF=28,29,30,31
sG=[32,33,34]; sGW=[35,36,37]
sSOF,sT0=38,39
sRET=40
sNC=42; sNOFF,sNQ,sNK=43,44,45
sQS=[46,47]; sT1,sT2=48,49
sSO2=50
sD=51
sBIAS=67
NKA,NVA=(4,2) if SH==32 else (2,4)
vKA=list(range(1,1+NKA)); vVA=list(range(1+NKA,7))
vDK=[7,8,9]; vDV=[10,11,12]; vOR,vOG,vOW=13,14,15
vNEG=[16,17,18,19]; vLS=[20,21,22,23]
vT=list(range(24,32)) if not RS else list(range(24,30))
VQ=32
vS=[64,96]
vP=[128,144]
vF=160; NB=4
vTS=[176,177,178,179]; vTM=[180,181]; vOX=[182,183]
vRB=184
if RS:
    vL=[20,176,184,188]
    vONE=180; vTM=[30,31]; vOX=[31,31]; vLS=vL; vRI=vNEG
    pass
else: vRI=vLS
vPK=192
AQ=192
L=a.L; assert L<NB
def vr(b,n=1): return f'v{b}' if n==1 else f'v[{b}:{b+n-1}]'
def ar(b,n=1): return f'a{b}' if n==1 else f'a[{b}:{b+n-1}]'
def sr(b,n=1): return f's{b}' if n==1 else f's[{b}:{b+n-1}]'
NKS=24//NQ
def qfrag(qb,k):
    i=qb*NKS+k
    return ar(AQ+4*i,4) if i<16 else vr(VQ+4*(i-16),4)

def tile_of(p):
    if p>=40:
        k,i,_=tile_of(p-40); return (k,i,True)
    if p<0:
        k,i,n=tile_of(p+40); assert n; return (k,i,False)
    if p<=29: return ('K',p//2+1,False) if p%2==0 else ('V',p//2,False)
    if p==30: return ('V',15,False)
    if p<=38: return ('Q',p-31,True)
    return ('K',0,True)
def posK(j): return -1 if j==0 else 2*(j-1)
def posV(j): return 30 if j==15 else 2*j+1
def grp(p): return (p//4)%3
def tig(p): return p%4

def dma_groups(p):
    kind,idx,_=tile_of(p)
    srd={'Q':SRDQ,'K':SRDK,'V':SRDV}[kind]
    vo=vDV if kind=='V' else vDK
    pol=a.qpol if kind=='Q' else a.kvpol
    setup=[I(f's_add_u32 m0, {sr(sGW[grp(p)])}, {tig(p)*TILE}'), I(f's_mov_b32 {sr(sSOF)}, {idx*TILE}')]
    if 'nodma' in ABL: return [setup]
    out=[]
    for j in range(3):
        off=f' offset:{1024*j}' if j else ''
        x=I(f'buffer_load_dwordx4 {vr(vo[j])}, {sr(srd,4)}, {sr(sSOF)} offen{off} {pol} lds',meta={'pos':p},cost=a.cdma)
        out.append((setup if j==0 else [])+[x])
    return out
def dma_tile(p): return sum(dma_groups(p),[])
def need(*ps,lgkm0=False): return I('NEED',meta={'tiles':list(ps),'lgkm0':lgkm0})
def bar(): return I('s_barrier')
def lanestamp(idx):
    if a.stamp!=2: return []
    return [I('s_memtime s[54:55]'),I('s_waitcnt lgkmcnt(0)'),I('s_sub_u32 s54, s54, s52'),
            I(f's_mul_i32 s65, {sr(sITEM)}, 21'),I(f's_add_u32 s65, s65, {idx}'),I('s_min_u32 s65, s65, 63'),
            I('s_mov_b32 s66, m0'),I('s_mov_b32 m0, s65'),I('s_nop 0'),I('v_writelane_b32 v0, s54, m0'),I('s_nop 0'),I('s_mov_b32 m0, s66')]

def prologue():
    o=[]; e=lambda t,**k:o.append(I(t,**k))
    e('s_cmp_ge_u32 s2, 256'); e('s_cbranch_scc1 L_end')
    if a.stamp: e('s_memrealtime s[98:99]')
    e('s_load_dwordx4 s[4:7], s[0:1], 0'); e('s_load_dwordx4 s[8:11], s[0:1], 16')
    if a.stamp: e('s_load_dwordx2 s[60:61], s[0:1], 40')
    e('v_lshrrev_b32 v24, 6, v0'); e('v_and_b32 v25, 63, v0')
    e(f'v_readfirstlane_b32 {sr(sW)}, v24')
    e(f's_and_b32 {sr(sT0)}, s2, 7'); e(f's_lshr_b32 {sr(sT1)}, s2, 4'); e(f's_lshl_b32 {sr(sT1)}, {sr(sT1)}, 3')
    e(f's_add_u32 {sr(sT0)}, {sr(sT0)}, {sr(sT1)}'); e(f's_mul_i32 {sr(sHOFF)}, {sr(sT0)}, {HEADB}')
    e(f's_lshr_b32 {sr(sT1)}, s2, 3'); e(f's_and_b32 {sr(sT1)}, {sr(sT1)}, 1'); e(f's_mul_i32 {sr(sT2)}, {sr(sT1)}, {HALFB}')
    e(f's_lshl_b32 {sr(sT0)}, {sr(sW)}, 3')
    for j in range(3):
        e(f'v_add_u32 v26, {64*j}, v25')
        e('v_mul_u32_u24 v27, 2731, v26'); e('v_lshrrev_b32 v27, 16, v27')
        e('v_mul_u32_u24 v28, 24, v27'); e('v_sub_u32 v28, v26, v28')
        e(f'v_add_u32 v27, {sr(sT0)}, v27')
        e('v_lshrrev_b32 v29, 1, v27'); e('v_and_b32 v30, 7, v29'); e('v_xor_b32 v30, v30, v28')
        e('v_mul_u32_u24 v31, 384, v27')
        e(f'v_lshl_add_u32 {vr(vDK[j])}, v30, 4, v31'); e(f'v_subrev_u32 {vr(vDK[j])}, {1024*j}, {vr(vDK[j])}')
        if SH==32: e('v_and_b32 v30, 1, v29'); e('v_lshlrev_b32 v30, 2, v30')
        else: e('v_and_b32 v30, 3, v29'); e('v_lshlrev_b32 v30, 1, v30')
        e('v_xor_b32 v30, v30, v28')
        e(f'v_lshl_add_u32 {vr(vDV[j])}, v30, 4, v31'); e(f'v_subrev_u32 {vr(vDV[j])}, {1024*j}, {vr(vDV[j])}')
    e('s_waitcnt lgkmcnt(0)')
    e(f's_add_u32 s4, s4, {sr(sT2)}'); e('s_addc_u32 s5, s5, 0')
    e(f's_add_u32 s10, s10, {sr(sT2)}'); e('s_addc_u32 s11, s11, 0')
    for srd,ptr,n in ((SRDQ,sQP,HALFB),(SRDK,sKP,HEADB),(SRDV,sVP,HEADB),(SRDO,sOP,HALFB)):
        e(f's_add_u32 {sr(srd)}, {sr(ptr)}, {sr(sHOFF)}'); e(f's_addc_u32 {sr(srd+1)}, {sr(ptr+1)}, 0')
        e(f's_mov_b32 {sr(srd+2)}, {n}'); e(f's_mov_b32 {sr(srd+3)}, 0x20000')
    e(f's_mov_b32 {sr(SRDO+2)}, 0')
    e(f's_mul_i32 {sr(sT0)}, {sr(sW)}, 3072')
    for j in range(3):
        e(f's_mov_b32 {sr(sG[j])}, {j*GRP}'); e(f's_add_u32 {sr(sGW[j])}, {sr(sT0)}, {j*GRP}')
    for p in range(-9,3): o.extend(dma_tile(p))
    e(f's_mov_b32 {sr(sC)}, {hex(f2u(C_SCALE))}'); e(f's_mov_b32 {sr(sNC)}, {hex(f2u(-C_SCALE))}')
    e(f's_mov_b32 {sr(sTHR)}, {"0x40004000" if RS else a.thr}'); e(f's_mov_b32 {sr(sITEM)}, 0')
    if RS:
        e('v_and_b32 v26, 15, v25'); e('v_mov_b32 v27, 0x3f803f80'); e('v_cmp_eq_u32 vcc, 0, v26'); e('s_nop 1')
        for i in range(4): e(f'v_cndmask_b32 {vr(vONE+i)}, 0, v27, vcc')
        e(f's_mov_b32 {sr(sBIAS)}, {hex(f2u(-a.bias))}')
    if SH==32:
        e('v_and_b32 v26, 31, v25'); e('v_lshrrev_b32 v27, 5, v25')
        e('v_mul_u32_u24 v28, 384, v26'); e('v_bfe_u32 v29, v26, 1, 3')
        for j in range(4):
            e(f'v_add_u32 v30, {2*j}, v27'); e('v_xor_b32 v30, v30, v29'); e(f'v_lshl_add_u32 {vr(vKA[j])}, v30, 4, v28')
        e('v_and_b32 v26, 15, v25'); e('v_lshrrev_b32 v28, 2, v26'); e('v_lshl_add_u32 v28, v27, 2, v28')
        e('v_mul_u32_u24 v28, 384, v28')
        e('v_bfe_u32 v29, v25, 4, 1'); e('v_lshlrev_b32 v29, 1, v29'); e('v_bfe_u32 v30, v26, 1, 1'); e('v_add_u32 v29, v29, v30')
        e('v_lshl_add_u32 v28, v29, 4, v28'); e('v_and_b32 v30, 1, v26'); e('v_lshl_add_u32 v28, v30, 3, v28')
        e('v_bfe_u32 v30, v26, 3, 1'); e('v_lshlrev_b32 v30, 6, v30')
        e(f'v_add_u32 {vr(vVA[0])}, v28, v30'); e('v_xor_b32 v30, 64, v30'); e(f'v_add_u32 {vr(vVA[1])}, v28, v30')
        e(f's_lshl_b32 {sr(sT0)}, {sr(sW)}, 12'); e(f's_add_u32 {sr(sT0)}, {sr(sT0)}, {STG}')
        e('v_and_b32 v26, 31, v25'); e('v_lshlrev_b32 v28, 7, v26'); e('v_lshl_add_u32 v28, v27, 3, v28'); e(f'v_add_u32 v28, {sr(sT0)}, v28')
        e('v_and_b32 v29, 7, v26'); e(f'v_lshl_add_u32 {vr(vOW)}, v29, 4, v28')
    else:
        e('v_and_b32 v26, 15, v25'); e('v_lshrrev_b32 v27, 4, v25')
        e('v_mul_u32_u24 v28, 384, v26'); e('v_bfe_u32 v29, v26, 1, 3')
        for j in range(2):
            e(f'v_add_u32 v30, {4*j}, v27'); e('v_xor_b32 v30, v30, v29'); e(f'v_lshl_add_u32 {vr(vKA[j])}, v30, 4, v28')
        e('v_lshrrev_b32 v28, 2, v26'); e('v_lshl_add_u32 v28, v27, 2, v28')
        e('v_bfe_u32 v29, v28, 1, 2'); e('v_lshlrev_b32 v29, 1, v29')
        e('v_mul_u32_u24 v28, 384, v28')
        e('v_bfe_u32 v30, v26, 1, 1'); e('v_lshl_add_u32 v28, v30, 4, v28')
        e('v_and_b32 v30, 1, v26'); e('v_lshl_add_u32 v28, v30, 3, v28')
        for j in range(4):
            e(f'v_xor_b32 v30, {2*j}, v29'); e(f'v_lshl_add_u32 {vr(vVA[j])}, v30, 4, v28')
        e(f's_lshl_b32 {sr(sT0)}, {sr(sW)}, 12'); e(f's_add_u32 {sr(sT0)}, {sr(sT0)}, {STG}')
        e('v_lshlrev_b32 v28, 7, v26'); e('v_and_b32 v30, 1, v27'); e('v_lshl_add_u32 v28, v30, 3, v28'); e(f'v_add_u32 v28, {sr(sT0)}, v28')
        e('v_and_b32 v29, 7, v26'); e('v_lshrrev_b32 v30, 1, v27'); e('v_xor_b32 v29, v29, v30'); e(f'v_lshl_add_u32 {vr(vOW)}, v29, 4, v28')
    e('v_lshrrev_b32 v26, 3, v25'); e('v_and_b32 v28, 7, v25'); e('v_xor_b32 v29, v28, v26')
    e('v_lshlrev_b32 v30, 7, v26'); e('v_lshl_add_u32 v30, v29, 4, v30'); e(f'v_add_u32 {vr(vOR)}, {sr(sT0)}, v30')
    e(f's_lshl_b32 {sr(sT1)}, {sr(sW)}, 6'); e(f'v_add_u32 v26, {sr(sT1)}, v26'); e('v_mul_u32_u24 v26, 384, v26')
    e(f'v_lshl_add_u32 {vr(vOG)}, v28, 4, v26')
    for j in range(2):
        e(f's_lshl_b32 {sr(sT0)}, {sr(sW)}, 1'); e(f's_add_u32 {sr(sT0)}, {sr(sT0)}, {(31+j)%12}')
        e(f's_cmp_ge_u32 {sr(sT0)}, 12'); e(f's_cselect_b32 {sr(sT1)}, 12, 0'); e(f's_sub_u32 {sr(sT0)}, {sr(sT0)}, {sr(sT1)}')
        e(f's_mul_i32 {sr(sQS[j])}, {sr(sT0)}, {TILE}')
    if a.stamp:
        e(f's_mov_b32 s62, 0x1000000'); e('s_mov_b32 s63, 0x20000')
        e('s_memtime s[52:53]'); e('s_memrealtime s[56:57]'); e('s_waitcnt lgkmcnt(0)')
    return o

def move_addr(regs,frm,to):
    if frm==to: return []
    return [I(f's_sub_u32 {sr(sD)}, {sr(sG[to])}, {sr(sG[frm])}')]+[I(f'v_add_u32 {vr(r)}, {sr(sD)}, {vr(r)}') for r in regs]

def q_addr(first):
    o=[]; e=lambda t,**k:o.append(I(t,**k))
    cur=0 if first else 1
    for j in range(2):
        if first: e(f's_add_u32 {sr(sT0)}, {sr(sQS[j])}, {2*GRP}')
        else: e(f's_add_u32 {sr(sT0)}, {sr(sQS[j])}, {sr(sG[0])}')
        e(f's_cmp_ge_u32 {sr(sT0)}, {RING}'); e(f's_cselect_b32 {sr(sT1)}, {RING}, 0'); e(f's_sub_u32 {sr(sT0)}, {sr(sT0)}, {sr(sT1)}')
        e(f's_sub_u32 {sr(sT0)}, {sr(sT0)}, {sr(sG[cur])}')
        for i,r in enumerate(vKA): e(f'v_add_u32 {vr(vT[j*NKA+i])}, {sr(sT0)}, {vr(r)}')
    return o
def q_reads():
    o=[]
    for qb in range(NQ):
        for k in range(NKS):
            if SH==32: adr=vT[qb*4+(k&3)]; off=(k>>2)*128
            else: adr=vT[(qb>>1)*2+(k&1)]; off=(qb&1)*16*384+(k>>1)*128
            o.append(I(f'ds_read_b128 {qfrag(qb,k)}, {vr(adr)} offset:{off}',cost=a.cds))
    return o
def q_first():
    return [need(*range(-9,-1),lgkm0=True),bar()]+q_addr(True)+q_reads()+[need(lgkm0=True),bar()]+dma_tile(3)

def chunk_blocks(ci):
    hi,dp=divmod(ci,3)
    if SH==32: return [(hi*96+dp*32+4*c,hi) for c in range(8)]
    return [((2*hi+(c>>2))*48+(4*dp+(c&3))*4, 2*hi+(c>>2)) for c in range(8)]
def stage_write(c,pk,cost=None):
    if SH==32: x,off=c<<4,0
    else: x,off=(c&3)<<5,(c>>2)*2048
    o=[]
    adr=vOW
    if x:
        adr=vOX[c&1]; o.append(I(f'v_xor_b32 {vr(adr)}, {x}, {vr(vOW)}'))
    o.append(I(f'ds_write_b64 {vr(adr)}, {vr(pk+2*c,2)} offset:{off}',cost=cost))
    return o
def o_store(reg,ci,i,cost=None,so=None):
    hi,dp=divmod(ci,3); so=sSO2 if so is None else so
    r=[I(f's_mov_b32 {sr(so)}, {(32*hi+8*i)*384+dp*128}')]
    if 'nost' not in ABL:
        r.append(I(f'buffer_store_dwordx4 {vr(reg,4)}, {vr(vOG)}, {sr(SRDO,4)}, {sr(so)} offen {a.opol}',cost=cost))
    return r

def xlane(op,regs,tmps):
    o=[]
    swaps=['v_permlane32_swap_b32'] if SH==32 else ['v_permlane16_swap_b32','v_permlane32_swap_b32']
    for sw in swaps:
        for r,t in zip(regs,tmps): o.append(I(f'v_mov_b32 {vr(t)}, {vr(r)}'))
        if len(regs)<3: o.append(I('s_nop 1' if len(regs)==1 else 's_nop 0'))
        for r,t in zip(regs,tmps): o.append(I(f'{sw} {vr(t)}, {vr(r)}'))
        for r,t in zip(regs,tmps): o.append(I(f'{op} {vr(r)}, {vr(t)}, {vr(r)}'))
    return o
def sreg(buf,qb,r):
    return vS[buf]+qb*EPQ+r
def max_tree(dst,regs):
    o=[I(f'v_max3_f32 {vr(dst)}, {vr(regs[0])}, {vr(regs[1])}, {vr(regs[2])}')]
    i=3
    while i+1<len(regs):
        o.append(I(f'v_max3_f32 {vr(dst)}, {vr(dst)}, {vr(regs[i])}, {vr(regs[i+1])}')); i+=2
    if i<len(regs): o.append(I(f'v_max_f32 {vr(dst)}, {vr(dst)}, {vr(regs[i])}'))
    return o


assert SH==16 and RS
class Gap:
    def __init__(s): s.mfma=None; s.sc=[]; s.mem=[]; s.val=[]; s.tail=[]; s.res=False
def nslots(x): return 2 if x.kind=='trans' else 1
def free_slots(g):
    if g.res: return 0
    return 2-max(0,len(g.sc)-1)-len(g.mem)-sum(nslots(x) for x in g.val)

class Ops:
    def __init__(s): s.ops=[]; s.idx={}
    def add(s,key,ins,deps=(),late=(),late2=(),early=None,prio=None):
        s.idx[key]=len(s.ops)
        s.ops.append(dict(ins=ins,deps=list(deps),late=list(late),late2=list(late2),early=early,key=key,prio=len(s.ops) if prio is None else prio))
    def resolve(s):
        for o in s.ops:
            for f in('deps','late','late2'): o[f]=[s.idx[d] for d in o[f] if d in s.idx]
        return s
def schedule(G,graph,gaps,pace=None,window=12):
    ops=graph.resolve().ops
    tot=sum(nslots(o['ins']) for o in ops)
    caps=[max(0,free_slots(G[g])) for g in gaps]; ctot=sum(caps)
    rate=min(1.0,(a.pace if pace is None else pace)*tot/max(ctot,1))
    placed={}; done=0; cum=0.0
    rem=sorted(range(len(ops)),key=lambda j:ops[j]['prio'])
    for gi,g in enumerate(gaps):
        b=caps[gi]; cum+=caps[gi]*rate
        while rem and b>0:
            pick=None
            for j in rem[:window]:
                o=ops[j]
                if nslots(o['ins'])>b: continue
                if o['early'] is not None and g<o['early']: continue
                if any(d not in placed for d in o['deps']): continue
                if any((d not in placed) or placed[d]>=gi for d in o['late']): continue
                if any((d not in placed) or placed[d]>=gi-1 for d in o['late2']): continue
                pick=j; break
            if pick is None or done+nslots(ops[pick]['ins'])>cum+a.slack/4+1: break
            G[g].val.append(ops[pick]['ins']); placed[pick]=gi; b-=nslots(ops[pick]['ins']); done+=nslots(ops[pick]['ins']); rem.remove(pick)
    left=[]; seen=set(placed)
    while rem:
        for j in rem:
            o=ops[j]
            if all(d in seen for d in o['deps']+o['late']+o['late2']):
                left.append(o['ins']); seen.add(j); rem.remove(j); break
        else: raise RuntimeError('cycle')
    return left

def conv_graph(gr,ci,x,pk,early=None,prio0=0,rinv_key=None):
    blk=chunk_blocks(ci)
    for c in range(8):
        base,qb=blk[c]
        for i in range(4):
            gr.add(('R',ci,c,i),I(f'v_accvgpr_read_b32 {vr(x+4*c+i)}, {ar(base+i)}'),early=None if early is None else early(c),prio=prio0+8*c+i)
        for i in range(2):
            gr.add(('M',ci,c,i),I(f'v_pk_mul_f32 {vr(x+4*c+2*i,2)}, {vr(x+4*c+2*i,2)}, {vr(vRI[qb]&~1,2)} op_sel:[0,{qb&1}] op_sel_hi:[1,{qb&1}]'),
                   deps=[('R',ci,c,2*i),('R',ci,c,2*i+1)],late=[('rcp',qb)],prio=prio0+8*(c+1)+4+i)
        for i in range(2):
            gr.add(('C',ci,c,i),I(f'v_cvt_pk_bf16_f32 {vr(pk+2*c+i)}, {vr(x+4*c+2*i)}, {vr(x+4*c+2*i+1)}'),deps=[('M',ci,c,i)],prio=prio0+8*(c+2)+6+i)
def xlane_graph(gr,tag,op,regs,tmps,dep_keys,prio0):
    prev=list(dep_keys); p=prio0
    for st,sw in enumerate(('v_permlane16_swap_b32','v_permlane32_swap_b32')):
        for i,(r,t) in enumerate(zip(regs,tmps)):
            gr.add((tag,'mov',st,i),I(f'v_mov_b32 {vr(t)}, {vr(r)}'),deps=[prev[i]] if prev[i] else [],prio=p+i)
        for i,(r,t) in enumerate(zip(regs,tmps)):
            gr.add((tag,'sw',st,i),I(f'{sw} {vr(t)}, {vr(r)}'),late2=[(tag,'mov',st,i)],prio=p+4+i)
        for i,(r,t) in enumerate(zip(regs,tmps)):
            gr.add((tag,'op',st,i),I(f'{op} {vr(r)}, {vr(t)}, {vr(r)}'),deps=[(tag,'sw',st,i)],prio=p+8+i)
        prev=[(tag,'op',st,i) for i in range(len(regs))]; p+=12
    return prev,p
CHUNK_PK={0:vP[0],1:vP[1],2:vPK,3:vPK+16,4:vPK+32,5:vPK+48}

def build_item():
    PB=PH+NRS
    NG=PH*16+PB*16
    G=[Gap() for _ in range(NG)]
    def gA(t,i): return (PH+(PH+PB)*t+i) if t>=0 else i
    def gB(t,i): return (PH+(PH+PB)*t+PH+i) if t<15 else (PH+(PH+PB)*15+i)
    frags=[]; fgap=[]
    for t in range(-1,16):
        if t<=14:
            buf=(t+1)&1
            for f in range(12):
                phi=len(frags); fb=vF+4*(phi%NB); frags.append(('K',t+1,f)); fgap.append(gA(t,4*f))
                k,kb=divmod(f,2)
                for qb in range(4):
                    d=vr(vS[buf]+8*qb+4*kb,4)
                    G[gA(t,4*f+qb)].mfma=I(f'{MF} {d}, {vr(fb,4)}, {qfrag(qb,k)}, {"0" if k==0 else d}')
        if t>=0:
            pb=vP[t&1]
            for qb in range(4):
                d=vr(vL[qb],4)
                G[gB(t,qb)].mfma=I(f'{MF} {d}, {vr(vONE,4)}, {vr(pb+4*qb,4)}, {"0" if t==0 else d}')
            for f in range(12):
                phi=len(frags); fb=vF+4*(phi%NB); frags.append(('V',t,f)); fgap.append(gB(t,NRS+4*f))
                for qb in range(4):
                    d=ar(qb*48+f*4,4)
                    G[gB(t,NRS+4*f+qb)].mfma=I(f'{MF} {d}, {vr(fb,4)}, {vr(pb+4*qb,4)}, {"0" if t==0 else d}')
    pre=[]; cur={'K':0,'V':0}; late_val=[]; lastrd={'K':-1,'V':-1}
    def force_val(g,x):
        for d in range(0,6):
            if free_slots(G[g-d])>=1: G[g-d].val.append(x); return g-d
        G[g].val.append(x); return g
    for phi in range(384):
        kind,ti,fi=frags[phi]; fb=vF+4*(phi%NB)
        p=posK(ti) if kind=='K' else posV(ti)
        adr=move_addr(vKA if kind=='K' else vVA,cur[kind],grp(p)); cur[kind]=grp(p)
        base=tig(p)*TILE
        if kind=='K':
            ks,kb=divmod(fi,2)
            r=[I(f'ds_read_b128 {vr(fb,4)}, {vr(vKA[ks&1])} offset:{base+kb*16*384+(ks>>1)*128}')]
        else:
            r=[I(f'ds_read_b64_tr_b16 {vr(fb+2*jj,2)}, {vr(vVA[fi&3])} offset:{base+16*jj*384+(fi>>2)*128}') for jj in range(2)]
        if 'nolds' in ABL: r=[]
        if phi<L: pre+=adr+r
        else:
            g=fgap[phi-L]
            if adr: late_val.append((g,adr,lastrd[kind]))
            lastrd[kind]=g+(0 if (a.tt or len(r)<2) else 1)
            if a.tt or len(r)<2: G[g].mem+=r
            else: G[g].mem.append(r[0]); G[g+1].mem.append(r[1])
        if phi>0 and 'nolds' not in ABL: G[fgap[phi]-1].sc.append(I(f'TOUCH {vr(vF+4*(phi%NB),4)}'))
    assert cur['K']==1 and cur['V']==1
    for g,adr,lo in late_val:
        n=len(adr)-1; gg=max(g-1-2*n,lo+1)
        while G[gg].sc and gg<g-1: gg+=1
        G[gg].sc.append(adr[0])
        q=gg
        for x in adr[1:]:
            while free_slots(G[q])<1 and q<g-1: q+=1
            G[q].val.append(x)
    lastvm=[-1]
    def place_vm(items,g0,g1):
        n=len(items); lo=g0
        for i,(setup,op,post) in enumerate(items):
            tgt=max(lo,g0+(i*(g1-g0))//max(n,1))
            g=tgt+ (len(setup) if i==0 or True else 0)*0
            while not(not G[g].res and not G[g].mem and not G[g].sc and not G[g].val) : g+=1
            q=g-1; pend=list(reversed(setup)); lim=max(lastvm[0],g0-1)
            while pend and q>lim and q>g-6:
                if not G[q].sc: G[q].sc.append(pend.pop(0))
                q-=1
            if pend:
                rest=list(reversed(pend))
                placed=[x for x in setup if x not in rest]
                for x in placed:
                    for qq in range(g-6,g):
                        if x in G[qq].sc: G[qq].sc.remove(x)
                G[g].sc+=setup
            if op is not None: G[g].mem.append(op)
            G[g].res=True
            for x in post: G[g+1].mem.append(x)
            lastvm[0]=g; lo=g+1
    def dma_items(p):
        out=[]
        for gr in dma_groups(p):
            setup=[x for x in gr if x.kind!='dma']; op=[x for x in gr if x.kind=='dma']
            out.append((setup,op[0] if op else None,[]))
        return out
    def store_item(reg,ci,i,so=None):
        o=o_store(reg,ci,i,so=so); return ([o[0]],o[1] if len(o)>1 else None,[])
    def place_alone(x,g,gmax):
        while (G[g].res or G[g].mem or G[g].sc or G[g].val) and g<gmax: g+=1
        G[g].mem.append(x); G[g].res=True; return g
    def place_mem(x,g,gmax):
        while (G[g].res or G[g].mem or len(G[g].sc)>1 or free_slots(G[g])<1) and g<gmax: g+=1
        G[g].mem.append(x); return g
    def stage_chunk(ci,wg,rg):
        pk=CHUNK_PK[ci]; last=-1
        for c in range(8):
            w=stage_write(c,pk)
            g=place_alone(w[-1],max(wg[c],last+1),wg[c]+8)
            if len(w)==2:
                cand=[q for q in range(g-1,max(last,g-6),-1) if free_slots(G[q])>=1]
                pref=[q for q in cand if G[q].mem or G[q].sc or G[q].val]
                if cand: G[(pref or cand)[0]].val.append(w[0])
                else: G[g].mem.insert(len(G[g].mem)-1,w[0])
            last=g
        out=[]
        for i in range(4):
            g=place_mem(I(f'ds_read_b128 {vr(pk+4*i,4)}, {vr(vOR)} offset:{i*1024}'),max(rg[i],last+1),rg[i]+8); last=g; out.append(g)
        return out
    def place_bar(g,needs,idx):
        while G[g].mem or G[g].sc or G[g].res: g+=1
        G[g].sc+= [need(*needs),bar()]+lanestamp(idx); G[g].res=True; return g
    bp=int(a.bpos*PH)+NRS
    bg={}
    bg[-1]=place_bar(gA(0,a.bara),[posV(0)],2)
    for t in range(0,15): bg[t]=place_bar(gB(t,bp),[posV(t+1)]+([posK(t+2)] if t<=13 else []),3+t)
    gq1=place_bar(gB(15,a.bq1),list(range(31,39)),19)
    for t in range(1,16):
        if 'nochk' in ABL: continue
        G[gA(t,PH-1) if t<15 else gB(14,PB-1)].res=True
    for i,g in enumerate((3,4,7,8)): G[g].mem.append(I(f'ds_read_b128 {vr(vP[0]+4*i,4)}, {vr(vOR)} offset:{i*1024}'))
    for c in range(8):
        g=9+4*(c>>1)+(c&1)
        x,off=(c&3)<<5,(c>>2)*2048
        adr=vOW
        if x:
            adr=(30,31)[c&1]; G[7+4*(c>>1)].val.append(I(f'v_xor_b32 {vr(adr)}, {x}, {vr(vOW)}'))
        G[g].mem.append(I(f'ds_write_b64 {vr(adr)}, {vr(vP[1]+2*c,2)} offset:{off}')); G[g].res=True
    for i,g in enumerate((23,24,27,28)): G[g].mem.append(I(f'ds_read_b128 {vr(vP[1]+4*i,4)}, {vr(vOR)} offset:{i*1024}'))
    def fixed_vm(item,g):
        setup,op,_=item
        q=g-1
        for x in reversed(setup):
            while G[q].sc: q-=1
            G[q].sc.append(x); q-=1
        if op is not None: G[g].mem.append(op)
        G[g].res=True
    defer={}
    for n,ci in enumerate((2,3,4,5)):
        s0=a.ostep0+a.ostepn*n; pk=CHUNK_PK[ci]
        stage_chunk(ci,[gA(s0+(c>>2),5+10*(c&3)) for c in range(8)],[gA(s0+1,40+i) for i in range(4)])
        defer.setdefault(s0+1,[]).extend([store_item(pk,ci,0),store_item(pk+4,ci,1)])
        defer.setdefault(s0+2,[]).extend([store_item(pk+8,ci,2),store_item(pk+12,ci,3)])
    sched={-1:[5]}; nxt=6
    for t in range(0,15):
        n=3 if (a.cu0<=t<a.cu0+5) else 2
        sched[t]=list(range(nxt,nxt+n)); nxt+=n
        assert sched[t][-1]<=2*t+12
    assert nxt==41
    def mix(xs,ys):
        out=[]; k=0
        for i,x in enumerate(xs):
            out.append(x)
            if ys and k<len(ys) and (i+1)*len(ys)>=(k+1)*len(xs): out.append(ys[k]); k+=1
        return out+ys[k:]
    st0=[store_item(vP[0]+4*i,0,i) for i in range(4)]
    st1=[store_item(vP[1]+4*i,1,i,so=94) for i in range(4)]
    for it,g in zip(dma_items(4),(2,5,6)): fixed_vm(it,g)
    for it,g in zip(st0,(25,29,33,37)): fixed_vm(it,g)
    for it,g in zip(st1,(34,38,42,46)): fixed_vm(it,g)
    lastvm[0]=PH-1
    place_vm(dma_items(5),bg[-1]+1,gA(0,PH//2))
    for t in range(0,15):
        g=bg[t]
        span=int((a.span if t<12 else a.spanq)*(PH+PB))
        gend=min(g+1+span, gB(14,PB-2) if t==14 else 10**9)
        place_vm(mix(sum((dma_items(p) for p in sched[t]),[]),defer.get(t,[])),g+1,gend)
    if a.e41b: place_vm(dma_items(41),gq1+2,gB(15,PB-2))
    grpS=[I(f's_add_u32 {sr(sNOFF)}, {sr(sHOFF)}, {ITEMSTEP}'),I(f's_cmp_lt_u32 {sr(sITEM)}, 3'),
          I(f's_cselect_b32 {sr(sNOFF)}, {sr(sNOFF)}, 0'),I(f's_cselect_b32 {sr(sNQ)}, {HALFB}, 0'),I(f's_cselect_b32 {sr(sNK)}, {HEADB}, 0')]
    def mv(srd,ptr,off,n=None):
        o=[I(f's_add_u32 {sr(srd)}, {sr(ptr)}, {sr(off)}'),I(f's_addc_u32 {sr(srd+1)}, {sr(ptr+1)}, 0')]
        if n is not None: o.append(I(f's_mov_b32 {sr(srd+2)}, {sr(n)}'))
        return o
    def sblock(ins,g):
        while G[g].sc or G[g].mem or G[g].val or G[g].res: g+=1
        G[g].sc+=ins; G[g].res=True
    sblock(grpS,gA(5,3)); sblock(mv(SRDQ,sQP,sNOFF,sNQ),gA(6,9))
    sblock(mv(SRDK,sKP,sNOFF,sNK),gA(11,5))
    sblock(mv(SRDV,sVP,sNOFF,sNK),gA(12,5))
    NT=len(vT)
    def sm_graph(t,gr,prio0=0,negkeys=None):
        buf=t&1; pb=vP[buf]
        for e in range(32):
            qb,r=divmod(e,8); T=vr(vT[e%NT]); Tp=vr(vT[(e-1)%NT]); p=prio0+4*e
            war=[('C',(e-NT)|1)] if e>=NT else []
            if negkeys: war=war+[negkeys[qb]]+(negkeys if e<NT else [])
            gr.add(('F',e),I(f'v_fma_f32 {T}, {vr(sreg(buf,qb,r))}, {sr(sC)}, {vr(vNEG[qb])}'),war,prio=p)
            gr.add(('X',e),I(f'v_exp_f32 {T}, {T}'),[('F',e)],prio=p+1)
            if r&1:
                gr.add(('C',e),I(f'v_cvt_pk_bf16_f32 {vr(pb+4*qb+(r>>1))}, {Tp}, {T}'),late=[('X',e),('X',e-1)],prio=p+2)
                if t>0 and 'nochk' not in ABL:
                    j=e>>1; m=vr(vTM[0])
                    if j==2: gr.add(('O',j),I(f'v_or3_b32 {m}, {vr(pb)}, {vr(pb+1)}, {vr(pb+2)}'),[('C',1),('C',3),('C',5)],prio=p+3)
                    elif j>2 and j%2==0: gr.add(('O',j),I(f'v_or3_b32 {m}, {m}, {vr(pb+j-1)}, {vr(pb+j)}'),[('O',j-2),('C',e-2),('C',e)],prio=p+3)
                    elif j==15: gr.add(('O',j),I(f'v_or_b32 {m}, {m}, {vr(pb+15)}'),[('O',14),('C',e)],prio=p+3)
        if t>0 and 'nochk' not in ABL:
            m=vr(vTM[0])
            gr.add(('and',),I(f'v_and_b32 {m}, {sr(sTHR)}, {m}'),[('O',15)],prio=prio0+200)
            gr.add(('cmp',),I(f'v_cmp_ne_u32 vcc, 0, {m}'),[('and',)],prio=prio0+201)
    tramp=[]; nleft=[]
    for t in range(0,16):
        gr=Ops()
        if t==0:
            for qb in range(4):
                regs=[sreg(0,qb,r) for r in range(8)]
                tr=max_tree(vNEG[qb],regs)
                for i,x in enumerate(tr): gr.add(('mx',qb,i),x,deps=[('mx',qb,i-1)] if i else [],prio=4*i+qb)
            fin,p=xlane_graph(gr,'xm','v_max_f32',vNEG,vT[:4],[('mx',qb,3) for qb in range(4)],16)
            for qb in range(4):
                gr.add(('ng1',qb),I(f'v_mul_f32 {vr(vNEG[qb])}, {sr(sNC)}, {vr(vNEG[qb])}'),[fin[qb]],prio=p+qb)
                gr.add(('ng2',qb),I(f'v_add_f32 {vr(vNEG[qb])}, {sr(sBIAS)}, {vr(vNEG[qb])}'),[('ng1',qb)],prio=p+4+qb)
            if 'nosm' not in ABL: sm_graph(0,gr,p+8,[('ng2',qb) for qb in range(4)])
            gaps=[gA(0,i) for i in range(a.w0a,PH)]
        else:
            if 'nosm' not in ABL: sm_graph(t,gr)
            if t<15: gaps=[gB(t-1,i) for i in range(W0,PB)]+[gA(t,i) for i in range(0,PH-1)]
            else: gaps=[gB(14,i) for i in range(W0,PB-1)]
        left=schedule(G,gr,gaps,pace=(4.0 if t in(0,15) else None))
        nleft.append(len(left))
        gl=gA(t,PH-1) if t<15 else gB(14,PB-1)
        G[gl].tail+=left
        if t>0 and 'nochk' not in ABL:
            G[gl].tail+=[I(f's_cbranch_vccnz L_tr{t}'),I(f'L_bk{t}:')]; tramp.append(t)
    print('softmax ops left over per tile:',nleft,file=sys.stderr)
    qa=q_addr(False); qr=q_reads()
    G[gq1].sc+=[x for x in qa if x.kind=='salu'][:0]
    g=gq1+1
    while G[g].mem or G[g].sc or G[g].res: g+=1
    G[g].sc+=qa; G[g].res=True
    g+=1; nin=0
    for x in qr[:a.nqin]:
        while g<gB(15,PB-1) and (G[g].res or G[g].mem or free_slots(G[g])<1): g+=1
        if g>=gB(15,PB-1) or G[g].res or G[g].mem: break
        G[g].mem.append(x); nin+=1; g+=a.qsp
    qrest=qr[nin:]
    gr=Ops()
    fin,p=xlane_graph(gr,'xl','v_add_f32',vL,vT[:4],[None]*4,0)
    for o in gr.ops[:4]: o['early']=gB(15,7)
    for qb in range(4): gr.add(('rcp',qb),I(f'v_rcp_f32 {vr(vRI[qb])}, {vr(vL[qb])}'),[fin[qb]],prio=p+qb)
    nl=len(gr.ops)
    def early_of(ci):
        hi,dp=divmod(ci,3)
        return lambda c: gB(15,NRS+4*(4*dp+(c&3))+(2*hi+(c>>2))+4)
    order=[0,3,1,4,2,5]; X=[vS[0],vS[1]]
    for n,ci in enumerate(order):
        conv_graph(gr,ci,X[n&1],CHUNK_PK[ci],early=early_of(ci),prio0=100+80*n)
    for n,ci in enumerate(order):
        for c in range(8):
            for i in range(4):
                o=gr.ops[gr.idx[('R',ci,c,i)]]
                if n>=2: o['deps'].append(('C',order[n-2],c,i>>1))
            if ci==1:
                for i in range(2): gr.ops[gr.idx[('C',ci,c,i)]]['early']=10**9
    lastl=gB(15,a.bq1)
    left=schedule(G,gr,[gB(15,i) for i in range(7,PB)],pace=4.0,window=16)
    inB=[k for k,o in gr.idx.items()]
    print('boundary ops left for the exposed stream:',len(left),'of',len(gr.ops),'; Q reads inside B(15):',nin,file=sys.stderr)
    chk=[g for g in range(gB(15,0),gB(15,PB)) if any(x.mn.startswith('v_permlane') or x.mn=='v_add_f32' or x.mn=='v_mov_b32' for x in G[g].val)]
    assert not any(x.mn.startswith('v_permlane') for x in left) and max(chk)<gq1+1, (max(chk)-gB(15,0),gq1-gB(15,0))
    body=[I('L_item:')]+[I('s_nop 0') for _ in range(a.padnop)]+[need(posK(0),posK(1)),bar()]+lanestamp(0)+pre+[I(f'TOUCH {vr(vF,4)}')]
    for g in range(NG):
        gp=G[g]
        body.append(gp.mfma); body+=gp.sc+gp.mem+gp.val+gp.tail
    extra={}
    def at(i,ins): extra.setdefault(i,[]).extend(ins)
    for i,x in enumerate(qrest): at(2+a.eqsp*i,[x])
    i0=2+a.eqsp*len(qrest)+(a.eqw if qrest else 0)
    at(i0,[I(f's_add_u32 {sr(SRDO)}, {sr(sOP)}, {sr(sHOFF)}'),I(f's_addc_u32 {sr(SRDO+1)}, {sr(sOP+1)}, 0'),I(f's_mov_b32 {sr(SRDO+2)}, {HALFB}'),
           need(lgkm0=True),bar()]+lanestamp(20))
    k=0
    for p in ((42,43) if a.e41b else (41,42,43)):
        for grp_ in dma_groups(p):
            at(i0+a.x41+a.xdsp*k,grp_); k+=1
    pos={id(x):i for i,x in enumerate(left)}
    lastw=-1
    for c in range(8):
        x=gr.ops[gr.idx[('C',0,c,1)]]['ins']; y=gr.ops[gr.idx[('C',0,c,0)]]['ins']
        i=max(pos.get(id(x),-1),pos.get(id(y),-1))+3
        i=max(i,lastw+a.wsp); lastw=i
        at(i,stage_write(c,vP[0]))
    bound=[]
    for i in range(max(len(left),max(extra)+1)):
        bound+=extra.get(i,[])
        if i<len(left): bound.append(left[i])
    return body,bound,tramp

def stage_all(ci,pk):
    o=[]
    for c in range(8): o+=stage_write(c,pk)
    return o
def final_drain():
    o=[]
    R=[vS[0],vS[0]+16,vS[1],vS[1]+16]
    pend=[]
    for n,ci in enumerate((0,1,2,3,4,5)):
        if ci>0: o+=stage_all(ci,CHUNK_PK[ci])
        for (r,cj) in pend:
            for i in range(4): o+=o_store(r+4*i,cj,i)
        r=R[n%4]
        for i in range(4): o.append(I(f'ds_read_b128 {vr(r+4*i,4)}, {vr(vOR)} offset:{i*1024}'))
        pend=[(r,ci)]
    for (r,cj) in pend:
        for i in range(4): o+=o_store(r+4*i,cj,i)
    return o
def rotate():
    o=[]; e=lambda t:o.append(I(t))
    for arr in (sG,sGW):
        e(f's_mov_b32 {sr(sT0)}, {sr(arr[0])}'); e(f's_mov_b32 {sr(arr[0])}, {sr(arr[1])}')
        e(f's_mov_b32 {sr(arr[1])}, {sr(arr[2])}'); e(f's_mov_b32 {sr(arr[2])}, {sr(sT0)}')
    e(f's_add_u32 {sr(sHOFF)}, {sr(sHOFF)}, {ITEMSTEP}')
    e(f's_add_u32 {sr(sITEM)}, {sr(sITEM)}, 1')
    return o

def rare(par):
    o=[]; e=o.append
    pb=vP[par]
    e(f'L_rare{par}:'); e('s_nop 15'); e('s_nop 3')
    m=vTM[0]; t=vTM[1]
    for qb in range(NQ):
        o+=[x.text for x in max_tree(m,[sreg(par,qb,r) for r in range(EPQ)])]
        for sw in (['v_permlane32_swap_b32'] if SH==32 else ['v_permlane16_swap_b32','v_permlane32_swap_b32']):
            e(f'v_mov_b32 {vr(t)}, {vr(m)}'); e('s_nop 1'); e(f'{sw} {vr(t)}, {vr(m)}'); e('s_nop 1'); e(f'v_max_f32 {vr(m)}, {vr(t)}, {vr(m)}')
        if RS:
            e(f'v_mov_b32 {vr(t)}, {sr(sBIAS)}'); e(f'v_fma_f32 {vr(m)}, {sr(sNC)}, {vr(m)}, {vr(t)}')
        else: e(f'v_mul_f32 {vr(m)}, {sr(sNC)}, {vr(m)}')
        e(f'v_min_f32 {vr(m)}, {vr(m)}, {vr(vNEG[qb])}')
        e(f'v_sub_f32 {vr(t)}, {vr(m)}, {vr(vNEG[qb])}')
        e(f'v_exp_f32 {vr(t)}, {vr(t)}'); e(f'v_mov_b32 {vr(vNEG[qb])}, {vr(m)}')
        e(f'v_mul_f32 {vr(vLS[qb])}, {vr(vLS[qb])}, {vr(t)}')
        for i in range(OPQ):
            x=vr(vT[i%4])
            e(f'v_accvgpr_read_b32 {x}, {ar(qb*OPQ+i)}'); e(f'v_mul_f32 {x}, {x}, {vr(t)}'); e(f'v_accvgpr_write_b32 {ar(qb*OPQ+i)}, {x}')
        for r in range(0,EPQ,2):
            x,y=vr(vT[0]),vr(vT[1])
            e(f'v_fma_f32 {x}, {vr(sreg(par,qb,r))}, {sr(sC)}, {vr(vNEG[qb])}'); e(f'v_fma_f32 {y}, {vr(sreg(par,qb,r+1))}, {sr(sC)}, {vr(vNEG[qb])}')
            e(f'v_exp_f32 {x}, {x}'); e(f'v_exp_f32 {y}, {y}'); e('s_nop 0')
            e(f'v_cvt_pk_bf16_f32 {vr(pb+(EPQ//2)*qb+(r>>1))}, {x}, {y}')
            if RS: continue
            if r==0: e(f'v_add_f32 {vr(vTS[qb])}, {x}, {y}')
            else:
                e(f'v_add_f32 {vr(vTS[qb])}, {vr(vTS[qb])}, {x}'); e(f'v_add_f32 {vr(vTS[qb])}, {vr(vTS[qb])}, {y}')
    e('s_nop 3'); e(f's_setpc_b64 {sr(sRET,2)}')
    return o

def stamp(slot):
    o=[]
    if a.stamp!=1: return o
    e=lambda t:o.append(I(t))
    e('s_memtime s[54:55]'); e('s_waitcnt lgkmcnt(0)'); e('s_sub_u32 s54, s54, s52')
    e(f's_lshl_b32 s64, s2, 2'); e(f's_add_u32 s64, s64, {sr(sW)}'); e('s_lshl_b32 s64, s64, 8')
    e(f's_lshl_b32 s65, {sr(sITEM)}, 5'); e('s_add_u32 s64, s64, s65'); e(f's_add_u32 s64, s64, {slot*4}')
    e(f'v_mov_b32 {vr(vTM[0])}, s54'); e(f'v_mov_b32 {vr(vTM[1])}, s64')
    o.append(I(f'buffer_store_dword {vr(vTM[0])}, {vr(vTM[1])}, s[60:63], 0 offen'))
    return o

pro=prologue()
qs0=q_first()
item,bound,tramp=build_item()
rot=rotate()
loopend=[I(f's_cmp_lt_u32 {sr(sITEM)}, 4'),I('s_cbranch_scc1 L_item')]
fin=final_drain()
if a.stamp:
    if a.stamp==1:
        item=item[:3]+stamp(0)+item[3:]+stamp(1)
        bound=bound+stamp(2)
    fin+= [I('s_memtime s[54:55]'),I('s_memrealtime s[58:59]'),I('s_waitcnt lgkmcnt(0)'),I('s_sub_u32 s54, s54, s52'),I('s_sub_u32 s58, s58, s56'),
         I('s_lshl_b32 s64, s2, 2'),I(f's_add_u32 s64, s64, {sr(sW)}'),I('s_lshl_b32 s64, s64, 8'),I('s_add_u32 s64, s64, 128'),
         I('v_mov_b32 v252, s54'),I('v_mov_b32 v253, s58'),I('v_mov_b32 v255, s64'),I('buffer_store_dwordx2 v[252:253], v255, s[60:63], 0 offen'),
         I('s_add_u32 s58, s58, s56'),I('v_mov_b32 v248, s98'),I('v_mov_b32 v249, s56'),I('v_mov_b32 v250, s58'),I('s_waitcnt vmcnt(0)'),I('s_memrealtime s[96:97]'),I('s_waitcnt lgkmcnt(0)'),I('v_mov_b32 v251, s96'),
         I('buffer_store_dwordx4 v[248:251], v255, s[60:63], 0 offen offset:16')]
    if a.stamp==3:
        fin+=[I('s_lshl_b32 s64, s2, 2'),I(f's_add_u32 s64, s64, {sr(sW)}'),I('s_lshl_b32 s64, s64, 8'),I('s_add_u32 s64, s64, 0x100000')]
        for k in range(15):
            fin+=[I(f's_sub_u32 s65, s{68+2*k}, s68'),I('v_mov_b32 v250, s65'),I('v_mov_b32 v251, s64'),I(f'buffer_store_dword v250, v251, s[60:63], 0 offen offset:{4*k}')]
    if a.stamp==2:
        fin+=[I('s_lshl_b32 s64, s2, 2'),I(f's_add_u32 s64, s64, {sr(sW)}'),I('s_lshl_b32 s64, s64, 8'),I('s_add_u32 s64, s64, 0x100000'),
              I('v_mbcnt_lo_u32_b32 v254, -1, 0'),I('v_mbcnt_hi_u32_b32 v254, -1, v254'),I('v_lshlrev_b32 v254, 2, v254'),I('v_add_u32 v254, s64, v254'),
              I('buffer_store_dword v0, v254, s[60:63], 0 offen')]
body=item+bound+rot+loopend
def trace():
    for x in pro: yield x,0
    for x in qs0: yield x,0
    for it in range(4):
        for x in body: yield x,40*it
    for x in fin: yield x,160
insert_waits(trace)
nf=check_hazards(trace,verbose=False)
insert_waits(trace)
nf+=check_hazards(trace)
print('nops inserted:',nf,file=sys.stderr)
lines=[]
for x in pro+qs0+body+fin: lines+=materialize(x)
lines.append('L_end:'); lines.append('s_endpgm')
for t in tramp:
    lines+=[f'L_tr{t}:',f's_call_b64 {sr(sRET,2)}, L_rare{t&1}',f's_branch L_bk{t}']
if tramp: lines+=rare(0)+rare(1)
txt='\n'.join(lines)
hdr=open('standalone__gqa_softmax__near_ridge.s.ref').read().split('; Override launch')[0]
hdr+='; Persistent kernel: 256 workgroups x 4 waves; a workgroup owns 256 query rows of a head per item, 4 items each.\n'
if a.final:
    open(a.out,'w').write(asmlib.wrap(NAME,txt,vgpr=512,accum=256,sgpr=102,grid=256,block=256,lds=163840,meta=False,header=hdr))
else:
    asmlib.build(NAME,txt,a.out,vgpr=512,accum=256,sgpr=102,grid=256,block=256,lds=163840)
print('instructions:',sum(1 for l in lines if not l.endswith(':')),file=sys.stderr)
```

```python
import argparse, sys, math, struct
from ir import *
import asmlib

ap=argparse.ArgumentParser()
A=ap.add_argument
A('--out',default='attn')
A('--final',type=int,default=0)
A('--shape',type=int,default=16)
A('--L',type=int,default=3)
A('--bpos',type=float,default=0.25)
A('--w0',type=int,default=-1)
A('--wend',type=int,default=-1)
A('--qpol',default='sc1 nt'); A('--kvpol',default='nt'); A('--opol',default='sc1 nt')
A('--thr',default='0x4b800000')
A('--stamp',type=int,default=0)
A('--abl',default='')
A('--pkmul',type=int,default=1)
A('--cdma',type=int,default=4)
A('--cds',type=int,default=4)
A('--cdw',type=int,default=8)
A('--vb',type=int,default=-1)
A('--span',type=float,default=0.92)
A('--spanq',type=float,default=0.6)
A('--e41',type=int,default=10); A('--edsp',type=int,default=30); A('--eq0',type=int,default=130); A('--eqsp',type=int,default=5); A('--eqw',type=int,default=20)
A('--nexp',type=int,default=2)
A('--ostep0',type=int,default=5); A('--ostepn',type=int,default=2)
A('--slack',type=int,default=4)
A('--tt',type=int,default=1)
A('--dwg',type=int,default=0)
A('--ditem',type=int,default=1)
A('--doff',type=int,default=2)
A('--cu0',type=int,default=0)
A('--e41b',type=int,default=1)
A('--wsp',type=int,default=8)
A('--qsp',type=int,default=1)
A('--w0a',type=int,default=3)
A('--bq1',type=int,default=26)
A('--nqin',type=int,default=16)
A('--xdsp',type=int,default=30)
A('--x41',type=int,default=8)
A('--bara',type=int,default=2)
A('--align',type=int,default=1)
A('--pace',type=float,default=1.0)
A('--padnop',type=int,default=0)
A('--e64',type=int,default=0)
A('--wspread',type=int,default=1)
A('--rs',type=int,default=-1)
A('--bias',type=float,default=20.0)
a=ap.parse_args()
ABL=set(a.abl.split(',')) if a.abl else set()
SH=a.shape
NQ=2 if SH==32 else 4
GPF=NQ
PH=12*GPF
VB=a.vb if a.vb>0 else (24 if SH==32 else 8)
W0=a.w0 if a.w0>=0 else 2
WEND=a.wend if a.wend>=0 else (1 if SH==32 else 2)
MF='v_mfma_f32_32x32x16_bf16' if SH==32 else 'v_mfma_f32_16x16x32_bf16'
RS=(a.rs if a.rs>=0 else (1 if SH==16 else 0))
assert not (RS and SH==32)
NRS=4 if RS else 0
EPQ=32//NQ
OPQ=192//NQ

NAME='standalone__gqa_softmax__near_ridge_kernel'
HEADB=512*384; HALFB=HEADB//2; TILE=12288; GRP=4*TILE; RING=12*TILE
STG=RING
ITEMSTEP=128*HEADB
def f2u(x): return struct.unpack('<I',struct.pack('<f',x))[0]
C_SCALE=math.log2(math.e)/math.sqrt(192.0)

sW=3
sQP,sKP,sVP,sOP=4,6,8,10
SRDQ,SRDK,SRDV,SRDO=12,16,20,24
sC,sTHR,sITEM,sHOFF=28,29,30,31
sG=[32,33,34]; sGW=[35,36,37]
sSOF,sT0=38,39
sRET=40
sNC=42; sNOFF,sNQ,sNK=43,44,45
sQS=[46,47]; sT1,sT2=48,49
sSO2=50
sD=51
sBIAS=67
NKA,NVA=(4,2) if SH==32 else (2,4)
vKA=list(range(1,1+NKA)); vVA=list(range(1+NKA,7))
vDK=[7,8,9]; vDV=[10,11,12]; vOR,vOG,vOW=13,14,15
vNEG=[16,17,18,19]; vLS=[20,21,22,23]
vT=list(range(24,32)) if not RS else list(range(24,30))
VQ=32
vS=[64,96]
vP=[128,144]
vF=160; NB=4
vTS=[176,177,178,179]; vTM=[180,181]; vOX=[182,183]
vRB=184
if RS:
    vL=[20,176,184,188]
    vONE=180; vTM=[30,31]; vOX=[31,31]; vLS=vL; vRI=vNEG
    pass
else: vRI=vLS
vPK=192
AQ=192
L=a.L; assert L<NB
def vr(b,n=1): return f'v{b}' if n==1 else f'v[{b}:{b+n-1}]'
def ar(b,n=1): return f'a{b}' if n==1 else f'a[{b}:{b+n-1}]'
def sr(b,n=1): return f's{b}' if n==1 else f's[{b}:{b+n-1}]'
NKS=24//NQ
def qfrag(qb,k):
    i=qb*NKS+k
    return ar(AQ+4*i,4) if i<16 else vr(VQ+4*(i-16),4)

def tile_of(p):
    if p>=40:
        k,i,_=tile_of(p-40); return (k,i,True)
    if p<0:
        k,i,n=tile_of(p+40); assert n; return (k,i,False)
    if p<=29: return ('K',p//2+1,False) if p%2==0 else ('V',p//2,False)
    if p==30: return ('V',15,False)
    if p<=38: return ('Q',p-31,True)
    return ('K',0,True)
def posK(j): return -1 if j==0 else 2*(j-1)
def posV(j): return 30 if j==15 else 2*j+1
def grp(p): return (p//4)%3
def tig(p): return p%4

def dma_groups(p):
    kind,idx,_=tile_of(p)
    srd={'Q':SRDQ,'K':SRDK,'V':SRDV}[kind]
    vo=vDV if kind=='V' else vDK
    pol=a.qpol if kind=='Q' else a.kvpol
    setup=[I(f's_add_u32 m0, {sr(sGW[grp(p)])}, {tig(p)*TILE}'), I(f's_mov_b32 {sr(sSOF)}, {idx*TILE}')]
    if 'nodma' in ABL: return [setup]
    out=[]
    for j in range(3):
        off=f' offset:{1024*j}' if j else ''
        x=I(f'buffer_load_dwordx4 {vr(vo[j])}, {sr(srd,4)}, {sr(sSOF)} offen{off} {pol} lds',meta={'pos':p},cost=a.cdma)
        out.append((setup if j==0 else [])+[x])
    return out
def dma_tile(p): return sum(dma_groups(p),[])
def need(*ps,lgkm0=False): return I('NEED',meta={'tiles':list(ps),'lgkm0':lgkm0})
def bar(): return I('s_barrier')
def lanestamp(idx):
    if a.stamp not in(2,5): return []
    return [I('s_memtime s[54:55]'),I('s_waitcnt lgkmcnt(0)'),I('s_sub_u32 s54, s54, s52'),
            I(f's_mul_i32 s65, {sr(sITEM)}, 21'),I(f's_add_u32 s65, s65, {idx}'),I('s_min_u32 s65, s65, 63'),
            I('s_mov_b32 s66, m0'),I('s_mov_b32 m0, s65'),I('s_nop 0'),I('v_writelane_b32 v0, s54, m0'),I('s_nop 0'),I('s_mov_b32 m0, s66')]

def prologue():
    o=[]; e=lambda t,**k:o.append(I(t,**k))
    e('s_cmp_ge_u32 s2, 256'); e('s_cbranch_scc1 L_end')
    if a.stamp: e('s_memrealtime s[98:99]')
    e('s_load_dwordx4 s[4:7], s[0:1], 0'); e('s_load_dwordx4 s[8:11], s[0:1], 16')
    if a.stamp: e(f's_load_dwordx2 s[60:61], s[0:1], {32 if a.stamp in(4,5) else 40}')
    e('v_lshrrev_b32 v24, 6, v0'); e('v_and_b32 v25, 63, v0')
    e(f'v_readfirstlane_b32 {sr(sW)}, v24')
    e(f's_and_b32 {sr(sT0)}, s2, 7'); e(f's_lshr_b32 {sr(sT1)}, s2, 4'); e(f's_lshl_b32 {sr(sT1)}, {sr(sT1)}, 3')
    e(f's_add_u32 {sr(sT0)}, {sr(sT0)}, {sr(sT1)}'); e(f's_mul_i32 {sr(sHOFF)}, {sr(sT0)}, {HEADB}')
    e(f's_lshr_b32 {sr(sT1)}, s2, 3'); e(f's_and_b32 {sr(sT1)}, {sr(sT1)}, 1'); e(f's_mul_i32 {sr(sT2)}, {sr(sT1)}, {HALFB}')
    e(f's_lshl_b32 {sr(sT0)}, {sr(sW)}, 3')
    for j in range(3):
        e(f'v_add_u32 v26, {64*j}, v25')
        e('v_mul_u32_u24 v27, 2731, v26'); e('v_lshrrev_b32 v27, 16, v27')
        e('v_mul_u32_u24 v28, 24, v27'); e('v_sub_u32 v28, v26, v28')
        e(f'v_add_u32 v27, {sr(sT0)}, v27')
        e('v_lshrrev_b32 v29, 1, v27'); e('v_and_b32 v30, 7, v29'); e('v_xor_b32 v30, v30, v28')
        e('v_mul_u32_u24 v31, 384, v27')
        e(f'v_lshl_add_u32 {vr(vDK[j])}, v30, 4, v31'); e(f'v_subrev_u32 {vr(vDK[j])}, {1024*j}, {vr(vDK[j])}')
        if SH==32: e('v_and_b32 v30, 1, v29'); e('v_lshlrev_b32 v30, 2, v30')
        else: e('v_and_b32 v30, 3, v29'); e('v_lshlrev_b32 v30, 1, v30')
        e('v_xor_b32 v30, v30, v28')
        e(f'v_lshl_add_u32 {vr(vDV[j])}, v30, 4, v31'); e(f'v_subrev_u32 {vr(vDV[j])}, {1024*j}, {vr(vDV[j])}')
    e('s_waitcnt lgkmcnt(0)')
    e(f's_add_u32 s4, s4, {sr(sT2)}'); e('s_addc_u32 s5, s5, 0')
    e(f's_add_u32 s10, s10, {sr(sT2)}'); e('s_addc_u32 s11, s11, 0')
    for srd,ptr,n in ((SRDQ,sQP,HALFB),(SRDK,sKP,HEADB),(SRDV,sVP,HEADB),(SRDO,sOP,HALFB)):
        e(f's_add_u32 {sr(srd)}, {sr(ptr)}, {sr(sHOFF)}'); e(f's_addc_u32 {sr(srd+1)}, {sr(ptr+1)}, 0')
        e(f's_mov_b32 {sr(srd+2)}, {n}'); e(f's_mov_b32 {sr(srd+3)}, 0x20000')
    e(f's_mov_b32 {sr(SRDO+2)}, 0')
    e(f's_mul_i32 {sr(sT0)}, {sr(sW)}, 3072')
    for j in range(3):
        e(f's_mov_b32 {sr(sG[j])}, {j*GRP}'); e(f's_add_u32 {sr(sGW[j])}, {sr(sT0)}, {j*GRP}')
    for p in range(-9,3): o.extend(dma_tile(p))
    e(f's_mov_b32 {sr(sC)}, {hex(f2u(C_SCALE))}'); e(f's_mov_b32 {sr(sNC)}, {hex(f2u(-C_SCALE))}')
    e(f's_mov_b32 {sr(sTHR)}, {"0x40004000" if RS else a.thr}'); e(f's_mov_b32 {sr(sITEM)}, 0')
    if RS:
        e('v_and_b32 v26, 15, v25'); e('v_mov_b32 v27, 0x3f803f80'); e('v_cmp_eq_u32 vcc, 0, v26'); e('s_nop 1')
        for i in range(4): e(f'v_cndmask_b32 {vr(vONE+i)}, 0, v27, vcc')
        e(f's_mov_b32 {sr(sBIAS)}, {hex(f2u(-a.bias))}')
    if SH==32:
        e('v_and_b32 v26, 31, v25'); e('v_lshrrev_b32 v27, 5, v25')
        e('v_mul_u32_u24 v28, 384, v26'); e('v_bfe_u32 v29, v26, 1, 3')
        for j in range(4):
            e(f'v_add_u32 v30, {2*j}, v27'); e('v_xor_b32 v30, v30, v29'); e(f'v_lshl_add_u32 {vr(vKA[j])}, v30, 4, v28')
        e('v_and_b32 v26, 15, v25'); e('v_lshrrev_b32 v28, 2, v26'); e('v_lshl_add_u32 v28, v27, 2, v28')
        e('v_mul_u32_u24 v28, 384, v28')
        e('v_bfe_u32 v29, v25, 4, 1'); e('v_lshlrev_b32 v29, 1, v29'); e('v_bfe_u32 v30, v26, 1, 1'); e('v_add_u32 v29, v29, v30')
        e('v_lshl_add_u32 v28, v29, 4, v28'); e('v_and_b32 v30, 1, v26'); e('v_lshl_add_u32 v28, v30, 3, v28')
        e('v_bfe_u32 v30, v26, 3, 1'); e('v_lshlrev_b32 v30, 6, v30')
        e(f'v_add_u32 {vr(vVA[0])}, v28, v30'); e('v_xor_b32 v30, 64, v30'); e(f'v_add_u32 {vr(vVA[1])}, v28, v30')
        e(f's_lshl_b32 {sr(sT0)}, {sr(sW)}, 12'); e(f's_add_u32 {sr(sT0)}, {sr(sT0)}, {STG}')
        e('v_and_b32 v26, 31, v25'); e('v_lshlrev_b32 v28, 7, v26'); e('v_lshl_add_u32 v28, v27, 3, v28'); e(f'v_add_u32 v28, {sr(sT0)}, v28')
        e('v_and_b32 v29, 7, v26'); e(f'v_lshl_add_u32 {vr(vOW)}, v29, 4, v28')
    else:
        e('v_and_b32 v26, 15, v25'); e('v_lshrrev_b32 v27, 4, v25')
        e('v_mul_u32_u24 v28, 384, v26'); e('v_bfe_u32 v29, v26, 1, 3')
        for j in range(2):
            e(f'v_add_u32 v30, {4*j}, v27'); e('v_xor_b32 v30, v30, v29'); e(f'v_lshl_add_u32 {vr(vKA[j])}, v30, 4, v28')
        e('v_lshrrev_b32 v28, 2, v26'); e('v_lshl_add_u32 v28, v27, 2, v28')
        e('v_bfe_u32 v29, v28, 1, 2'); e('v_lshlrev_b32 v29, 1, v29')
        e('v_mul_u32_u24 v28, 384, v28')
        e('v_bfe_u32 v30, v26, 1, 1'); e('v_lshl_add_u32 v28, v30, 4, v28')
        e('v_and_b32 v30, 1, v26'); e('v_lshl_add_u32 v28, v30, 3, v28')
        for j in range(4):
            e(f'v_xor_b32 v30, {2*j}, v29'); e(f'v_lshl_add_u32 {vr(vVA[j])}, v30, 4, v28')
        e(f's_lshl_b32 {sr(sT0)}, {sr(sW)}, 12'); e(f's_add_u32 {sr(sT0)}, {sr(sT0)}, {STG}')
        e('v_lshlrev_b32 v28, 7, v26'); e('v_and_b32 v30, 1, v27'); e('v_lshl_add_u32 v28, v30, 3, v28'); e(f'v_add_u32 v28, {sr(sT0)}, v28')
        e('v_and_b32 v29, 7, v26'); e('v_lshrrev_b32 v30, 1, v27'); e('v_xor_b32 v29, v29, v30'); e(f'v_lshl_add_u32 {vr(vOW)}, v29, 4, v28')
    e('v_lshrrev_b32 v26, 3, v25'); e('v_and_b32 v28, 7, v25'); e('v_xor_b32 v29, v28, v26')
    e('v_lshlrev_b32 v30, 7, v26'); e('v_lshl_add_u32 v30, v29, 4, v30'); e(f'v_add_u32 {vr(vOR)}, {sr(sT0)}, v30')
    e(f's_lshl_b32 {sr(sT1)}, {sr(sW)}, 6'); e(f'v_add_u32 v26, {sr(sT1)}, v26'); e('v_mul_u32_u24 v26, 384, v26')
    e(f'v_lshl_add_u32 {vr(vOG)}, v28, 4, v26')
    for j in range(2):
        e(f's_lshl_b32 {sr(sT0)}, {sr(sW)}, 1'); e(f's_add_u32 {sr(sT0)}, {sr(sT0)}, {(31+j)%12}')
        e(f's_cmp_ge_u32 {sr(sT0)}, 12'); e(f's_cselect_b32 {sr(sT1)}, 12, 0'); e(f's_sub_u32 {sr(sT0)}, {sr(sT0)}, {sr(sT1)}')
        e(f's_mul_i32 {sr(sQS[j])}, {sr(sT0)}, {TILE}')
    if a.stamp:
        e(f's_mov_b32 s62, {256 if a.stamp in(4,5) else 0x1000000}'); e('s_mov_b32 s63, 0x20000')
        e('s_memtime s[52:53]'); e('s_memrealtime s[56:57]'); e('s_waitcnt lgkmcnt(0)')
    return o

def move_addr(regs,frm,to):
    if frm==to: return []
    return [I(f's_sub_u32 {sr(sD)}, {sr(sG[to])}, {sr(sG[frm])}')]+[I(f'v_add_u32 {vr(r)}, {sr(sD)}, {vr(r)}') for r in regs]

def q_addr(first):
    o=[]; e=lambda t,**k:o.append(I(t,**k))
    cur=0 if first else 1
    for j in range(2):
        if first: e(f's_add_u32 {sr(sT0)}, {sr(sQS[j])}, {2*GRP}')
        else: e(f's_add_u32 {sr(sT0)}, {sr(sQS[j])}, {sr(sG[0])}')
        e(f's_cmp_ge_u32 {sr(sT0)}, {RING}'); e(f's_cselect_b32 {sr(sT1)}, {RING}, 0'); e(f's_sub_u32 {sr(sT0)}, {sr(sT0)}, {sr(sT1)}')
        e(f's_sub_u32 {sr(sT0)}, {sr(sT0)}, {sr(sG[cur])}')
        for i,r in enumerate(vKA): e(f'v_add_u32 {vr(vT[j*NKA+i])}, {sr(sT0)}, {vr(r)}')
    return o
def q_reads():
    o=[]
    for qb in range(NQ):
        for k in range(NKS):
            if SH==32: adr=vT[qb*4+(k&3)]; off=(k>>2)*128
            else: adr=vT[(qb>>1)*2+(k&1)]; off=(qb&1)*16*384+(k>>1)*128
            o.append(I(f'ds_read_b128 {qfrag(qb,k)}, {vr(adr)} offset:{off}',cost=a.cds))
    return o
def q_first():
    return [need(*range(-9,-1),lgkm0=True),bar()]+q_addr(True)+q_reads()+[need(lgkm0=True),bar()]+dma_tile(3)

def chunk_blocks(ci):
    hi,dp=divmod(ci,3)
    if SH==32: return [(hi*96+dp*32+4*c,hi) for c in range(8)]
    return [((2*hi+(c>>2))*48+(4*dp+(c&3))*4, 2*hi+(c>>2)) for c in range(8)]
def stage_write(c,pk,cost=None):
    if SH==32: x,off=c<<4,0
    else: x,off=(c&3)<<5,(c>>2)*2048
    o=[]
    adr=vOW
    if x:
        adr=vOX[c&1]; o.append(I(f'v_xor_b32 {vr(adr)}, {x}, {vr(vOW)}'))
    o.append(I(f'ds_write_b64 {vr(adr)}, {vr(pk+2*c,2)} offset:{off}',cost=cost))
    return o
def o_store(reg,ci,i,cost=None,so=None):
    hi,dp=divmod(ci,3); so=sSO2 if so is None else so
    r=[I(f's_mov_b32 {sr(so)}, {(32*hi+8*i)*384+dp*128}')]
    if 'nost' not in ABL:
        r.append(I(f'buffer_store_dwordx4 {vr(reg,4)}, {vr(vOG)}, {sr(SRDO,4)}, {sr(so)} offen {a.opol}',cost=cost))
    return r

def xlane(op,regs,tmps):
    o=[]
    swaps=['v_permlane32_swap_b32'] if SH==32 else ['v_permlane16_swap_b32','v_permlane32_swap_b32']
    for sw in swaps:
        for r,t in zip(regs,tmps): o.append(I(f'v_mov_b32 {vr(t)}, {vr(r)}'))
        if len(regs)<3: o.append(I('s_nop 1' if len(regs)==1 else 's_nop 0'))
        for r,t in zip(regs,tmps): o.append(I(f'{sw} {vr(t)}, {vr(r)}'))
        for r,t in zip(regs,tmps): o.append(I(f'{op} {vr(r)}, {vr(t)}, {vr(r)}'))
    return o
def sreg(buf,qb,r):
    return vS[buf]+qb*EPQ+r
def max_tree(dst,regs):
    o=[I(f'v_max3_f32 {vr(dst)}, {vr(regs[0])}, {vr(regs[1])}, {vr(regs[2])}')]
    i=3
    while i+1<len(regs):
        o.append(I(f'v_max3_f32 {vr(dst)}, {vr(dst)}, {vr(regs[i])}, {vr(regs[i+1])}')); i+=2
    if i<len(regs): o.append(I(f'v_max_f32 {vr(dst)}, {vr(dst)}, {vr(regs[i])}'))
    return o


assert SH==16 and RS
class Gap:
    def __init__(s): s.mfma=None; s.sc=[]; s.mem=[]; s.val=[]; s.tail=[]; s.res=False
def nslots(x): return 2 if x.kind=='trans' else 1
def free_slots(g):
    if g.res: return 0
    return 2-max(0,len(g.sc)-1)-len(g.mem)-sum(nslots(x) for x in g.val)

class Ops:
    def __init__(s): s.ops=[]; s.idx={}
    def add(s,key,ins,deps=(),late=(),late2=(),early=None,prio=None):
        s.idx[key]=len(s.ops)
        s.ops.append(dict(ins=ins,deps=list(deps),late=list(late),late2=list(late2),early=early,key=key,prio=len(s.ops) if prio is None else prio))
    def resolve(s):
        for o in s.ops:
            for f in('deps','late','late2'): o[f]=[s.idx[d] for d in o[f] if d in s.idx]
        return s
def schedule(G,graph,gaps,pace=None,window=12):
    ops=graph.resolve().ops
    tot=sum(nslots(o['ins']) for o in ops)
    caps=[max(0,free_slots(G[g])) for g in gaps]; ctot=sum(caps)
    rate=min(1.0,(a.pace if pace is None else pace)*tot/max(ctot,1))
    placed={}; done=0; cum=0.0
    rem=sorted(range(len(ops)),key=lambda j:ops[j]['prio'])
    for gi,g in enumerate(gaps):
        b=caps[gi]; cum+=caps[gi]*rate
        while rem and b>0:
            pick=None
            for j in rem[:window]:
                o=ops[j]
                if nslots(o['ins'])>b: continue
                if o['early'] is not None and g<o['early']: continue
                if any(d not in placed for d in o['deps']): continue
                if any((d not in placed) or placed[d]>=gi for d in o['late']): continue
                if any((d not in placed) or placed[d]>=gi-1 for d in o['late2']): continue
                pick=j; break
            if pick is None or done+nslots(ops[pick]['ins'])>cum+a.slack/4+1: break
            G[g].val.append(ops[pick]['ins']); placed[pick]=gi; b-=nslots(ops[pick]['ins']); done+=nslots(ops[pick]['ins']); rem.remove(pick)
    left=[]; seen=set(placed)
    while rem:
        for j in rem:
            o=ops[j]
            if all(d in seen for d in o['deps']+o['late']+o['late2']):
                left.append(o['ins']); seen.add(j); rem.remove(j); break
        else: raise RuntimeError('cycle')
    return left

def conv_graph(gr,ci,x,pk,early=None,prio0=0,rinv_key=None):
    blk=chunk_blocks(ci)
    for c in range(8):
        base,qb=blk[c]
        for i in range(4):
            gr.add(('R',ci,c,i),I(f'v_accvgpr_read_b32 {vr(x+4*c+i)}, {ar(base+i)}'),early=None if early is None else early(c),prio=prio0+8*c+i)
        for i in range(2):
            gr.add(('M',ci,c,i),I(f'v_pk_mul_f32 {vr(x+4*c+2*i,2)}, {vr(x+4*c+2*i,2)}, {vr(vRI[qb]&~1,2)} op_sel:[0,{qb&1}] op_sel_hi:[1,{qb&1}]'),
                   deps=[('R',ci,c,2*i),('R',ci,c,2*i+1)],late=[('rcp',qb)],prio=prio0+8*(c+1)+4+i)
        for i in range(2):
            gr.add(('C',ci,c,i),I(f'v_cvt_pk_bf16_f32 {vr(pk+2*c+i)}, {vr(x+4*c+2*i)}, {vr(x+4*c+2*i+1)}'),deps=[('M',ci,c,i)],prio=prio0+8*(c+2)+6+i)
def xlane_graph(gr,tag,op,regs,tmps,dep_keys,prio0):
    prev=list(dep_keys); p=prio0
    for st,sw in enumerate(('v_permlane16_swap_b32','v_permlane32_swap_b32')):
        for i,(r,t) in enumerate(zip(regs,tmps)):
            gr.add((tag,'mov',st,i),I(f'v_mov_b32 {vr(t)}, {vr(r)}'),deps=[prev[i]] if prev[i] else [],prio=p+i)
        for i,(r,t) in enumerate(zip(regs,tmps)):
            gr.add((tag,'sw',st,i),I(f'{sw} {vr(t)}, {vr(r)}'),late2=[(tag,'mov',st,i)],prio=p+4+i)
        for i,(r,t) in enumerate(zip(regs,tmps)):
            gr.add((tag,'op',st,i),I(f'{op} {vr(r)}, {vr(t)}, {vr(r)}'),deps=[(tag,'sw',st,i)],prio=p+8+i)
        prev=[(tag,'op',st,i) for i in range(len(regs))]; p+=12
    return prev,p
CHUNK_PK={0:vP[0],1:vP[1],2:vPK,3:vPK+16,4:vPK+32,5:vPK+48}

def build_item():
    PB=PH+NRS
    NG=PH*16+PB*16
    G=[Gap() for _ in range(NG)]
    def gA(t,i): return (PH+(PH+PB)*t+i) if t>=0 else i
    def gB(t,i): return (PH+(PH+PB)*t+PH+i) if t<15 else (PH+(PH+PB)*15+i)
    frags=[]; fgap=[]
    for t in range(-1,16):
        if t<=14:
            buf=(t+1)&1
            for f in range(12):
                phi=len(frags); fb=vF+4*(phi%NB); frags.append(('K',t+1,f)); fgap.append(gA(t,4*f))
                k,kb=divmod(f,2)
                for qb in range(4):
                    d=vr(vS[buf]+8*qb+4*kb,4)
                    G[gA(t,4*f+qb)].mfma=I(f'{MF} {d}, {vr(fb,4)}, {qfrag(qb,k)}, {"0" if k==0 else d}')
        if t>=0:
            pb=vP[t&1]
            for qb in range(4):
                d=vr(vL[qb],4)
                G[gB(t,qb)].mfma=I(f'{MF} {d}, {vr(vONE,4)}, {vr(pb+4*qb,4)}, {"0" if t==0 else d}')
            for f in range(12):
                phi=len(frags); fb=vF+4*(phi%NB); frags.append(('V',t,f)); fgap.append(gB(t,NRS+4*f))
                for qb in range(4):
                    d=ar(qb*48+f*4,4)
                    G[gB(t,NRS+4*f+qb)].mfma=I(f'{MF} {d}, {vr(fb,4)}, {vr(pb+4*qb,4)}, {"0" if t==0 else d}')
    pre=[]; cur={'K':0,'V':0}; late_val=[]; lastrd={'K':-1,'V':-1}
    def force_val(g,x):
        for d in range(0,6):
            if free_slots(G[g-d])>=1: G[g-d].val.append(x); return g-d
        G[g].val.append(x); return g
    for phi in range(384):
        kind,ti,fi=frags[phi]; fb=vF+4*(phi%NB)
        p=posK(ti) if kind=='K' else posV(ti)
        adr=move_addr(vKA if kind=='K' else vVA,cur[kind],grp(p)); cur[kind]=grp(p)
        base=tig(p)*TILE
        if kind=='K':
            ks,kb=divmod(fi,2)
            r=[I(f'ds_read_b128 {vr(fb,4)}, {vr(vKA[ks&1])} offset:{base+kb*16*384+(ks>>1)*128}')]
        else:
            r=[I(f'ds_read_b64_tr_b16 {vr(fb+2*jj,2)}, {vr(vVA[fi&3])} offset:{base+16*jj*384+(fi>>2)*128}') for jj in range(2)]
        if 'nolds' in ABL: r=[]
        if phi<L: pre+=adr+r
        else:
            g=fgap[phi-L]
            if adr: late_val.append((g,adr,lastrd[kind]))
            lastrd[kind]=g+(0 if (a.tt or len(r)<2) else 1)
            if a.tt or len(r)<2: G[g].mem+=r
            else: G[g].mem.append(r[0]); G[g+1].mem.append(r[1])
        if phi>0 and 'nolds' not in ABL: G[fgap[phi]-1].sc.append(I(f'TOUCH {vr(vF+4*(phi%NB),4)}'))
    assert cur['K']==1 and cur['V']==1
    for g,adr,lo in late_val:
        n=len(adr)-1; gg=max(g-1-2*n,lo+1)
        while G[gg].sc and gg<g-1: gg+=1
        G[gg].sc.append(adr[0])
        q=gg
        for x in adr[1:]:
            while free_slots(G[q])<1 and q<g-1: q+=1
            G[q].val.append(x)
    lastvm=[-1]
    def place_vm(items,g0,g1):
        n=len(items); lo=g0
        for i,(setup,op,post) in enumerate(items):
            tgt=max(lo,g0+(i*(g1-g0))//max(n,1))
            g=tgt+ (len(setup) if i==0 or True else 0)*0
            while not(not G[g].res and not G[g].mem and not G[g].sc and not G[g].val) : g+=1
            q=g-1; pend=list(reversed(setup)); lim=max(lastvm[0],g0-1)
            while pend and q>lim and q>g-6:
                if not G[q].sc: G[q].sc.append(pend.pop(0))
                q-=1
            if pend:
                rest=list(reversed(pend))
                placed=[x for x in setup if x not in rest]
                for x in placed:
                    for qq in range(g-6,g):
                        if x in G[qq].sc: G[qq].sc.remove(x)
                G[g].sc+=setup
            if op is not None: G[g].mem.append(op)
            G[g].res=True
            for x in post: G[g+1].mem.append(x)
            lastvm[0]=g; lo=g+1
    def dma_items(p):
        out=[]
        for gr in dma_groups(p):
            setup=[x for x in gr if x.kind!='dma']; op=[x for x in gr if x.kind=='dma']
            out.append((setup,op[0] if op else None,[]))
        return out
    def store_item(reg,ci,i,so=None):
        o=o_store(reg,ci,i,so=so); return ([o[0]],o[1] if len(o)>1 else None,[])
    def place_alone(x,g,gmax):
        while (G[g].res or G[g].mem or G[g].sc or G[g].val) and g<gmax: g+=1
        G[g].mem.append(x); G[g].res=True; return g
    def place_mem(x,g,gmax):
        while (G[g].res or G[g].mem or len(G[g].sc)>1 or free_slots(G[g])<1) and g<gmax: g+=1
        G[g].mem.append(x); return g
    def stage_chunk(ci,wg,rg):
        pk=CHUNK_PK[ci]; last=-1
        for c in range(8):
            w=stage_write(c,pk)
            g=place_alone(w[-1],max(wg[c],last+1),wg[c]+8)
            if len(w)==2:
                cand=[q for q in range(g-1,max(last,g-6),-1) if free_slots(G[q])>=1]
                pref=[q for q in cand if G[q].mem or G[q].sc or G[q].val]
                if cand: G[(pref or cand)[0]].val.append(w[0])
                else: G[g].mem.insert(len(G[g].mem)-1,w[0])
            last=g
        out=[]
        for i in range(4):
            g=place_mem(I(f'ds_read_b128 {vr(pk+4*i,4)}, {vr(vOR)} offset:{i*1024}'),max(rg[i],last+1),rg[i]+8); last=g; out.append(g)
        return out
    def place_bar(g,needs,idx):
        while G[g].mem or G[g].sc or G[g].res: g+=1
        G[g].sc+= [need(*needs),bar()]+lanestamp(idx); G[g].res=True; return g
    bp=int(a.bpos*PH)+NRS
    bg={}
    bg[-1]=place_bar(gA(0,a.bara),[posV(0)],2)
    for t in range(0,15): bg[t]=place_bar(gB(t,bp),[posV(t+1)]+([posK(t+2)] if t<=13 else []),3+t)
    gq1=place_bar(gB(15,a.bq1),list(range(31,39)),19)
    for t in range(1,16):
        if 'nochk' in ABL: continue
        G[gA(t,PH-1) if t<15 else gB(14,PB-1)].res=True
    for i,g in enumerate((3,4,7,8)): G[g].mem.append(I(f'ds_read_b128 {vr(vP[0]+4*i,4)}, {vr(vOR)} offset:{i*1024}'))
    for c in range(8):
        g=9+4*(c>>1)+(c&1)
        x,off=(c&3)<<5,(c>>2)*2048
        adr=vOW
        if x:
            adr=(30,31)[c&1]; G[7+4*(c>>1)].val.append(I(f'v_xor_b32 {vr(adr)}, {x}, {vr(vOW)}'))
        G[g].mem.append(I(f'ds_write_b64 {vr(adr)}, {vr(vP[1]+2*c,2)} offset:{off}')); G[g].res=True
    for i,g in enumerate((23,24,27,28)): G[g].mem.append(I(f'ds_read_b128 {vr(vP[1]+4*i,4)}, {vr(vOR)} offset:{i*1024}'))
    def fixed_vm(item,g):
        setup,op,_=item
        q=g-1
        for x in reversed(setup):
            while G[q].sc: q-=1
            G[q].sc.append(x); q-=1
        if op is not None: G[g].mem.append(op)
        G[g].res=True
    defer={}
    for n,ci in enumerate((2,3,4,5)):
        s0=a.ostep0+a.ostepn*n; pk=CHUNK_PK[ci]
        stage_chunk(ci,[gA(s0+(c>>2),5+10*(c&3)) for c in range(8)],[gA(s0+1,40+i) for i in range(4)])
        defer.setdefault(s0+1,[]).extend([store_item(pk,ci,0),store_item(pk+4,ci,1)])
        defer.setdefault(s0+2,[]).extend([store_item(pk+8,ci,2),store_item(pk+12,ci,3)])
    sched={-1:[5]}; nxt=6
    for t in range(0,15):
        n=3 if (a.cu0<=t<a.cu0+5) else 2
        sched[t]=list(range(nxt,nxt+n)); nxt+=n
        assert sched[t][-1]<=2*t+12
    assert nxt==41
    def mix(xs,ys):
        out=[]; k=0
        for i,x in enumerate(xs):
            out.append(x)
            if ys and k<len(ys) and (i+1)*len(ys)>=(k+1)*len(xs): out.append(ys[k]); k+=1
        return out+ys[k:]
    st0=[store_item(vP[0]+4*i,0,i) for i in range(4)]
    st1=[store_item(vP[1]+4*i,1,i,so=94) for i in range(4)]
    for it,g in zip(dma_items(4),(2,5,6)): fixed_vm(it,g)
    for it,g in zip(st0,(25,29,33,37)): fixed_vm(it,g)
    for it,g in zip(st1,(34,38,42,46)): fixed_vm(it,g)
    lastvm[0]=PH-1
    place_vm(dma_items(5),bg[-1]+1,gA(0,PH//2))
    for t in range(0,15):
        g=bg[t]
        span=int((a.span if t<12 else a.spanq)*(PH+PB))
        gend=min(g+1+span, gB(14,PB-2) if t==14 else 10**9)
        place_vm(mix(sum((dma_items(p) for p in sched[t]),[]),defer.get(t,[])),g+1,gend)
    if a.e41b: place_vm(dma_items(41),gq1+2,gB(15,PB-2))
    grpS=[I(f's_add_u32 {sr(sNOFF)}, {sr(sHOFF)}, {ITEMSTEP}'),I(f's_cmp_lt_u32 {sr(sITEM)}, 3'),
          I(f's_cselect_b32 {sr(sNOFF)}, {sr(sNOFF)}, 0'),I(f's_cselect_b32 {sr(sNQ)}, {HALFB}, 0'),I(f's_cselect_b32 {sr(sNK)}, {HEADB}, 0')]
    def mv(srd,ptr,off,n=None):
        o=[I(f's_add_u32 {sr(srd)}, {sr(ptr)}, {sr(off)}'),I(f's_addc_u32 {sr(srd+1)}, {sr(ptr+1)}, 0')]
        if n is not None: o.append(I(f's_mov_b32 {sr(srd+2)}, {sr(n)}'))
        return o
    def sblock(ins,g):
        while G[g].sc or G[g].mem or G[g].val or G[g].res: g+=1
        G[g].sc+=ins; G[g].res=True
    sblock(grpS,gA(5,3)); sblock(mv(SRDQ,sQP,sNOFF,sNQ),gA(6,9))
    sblock(mv(SRDK,sKP,sNOFF,sNK),gA(11,5))
    sblock(mv(SRDV,sVP,sNOFF,sNK),gA(12,5))
    NT=len(vT)
    def sm_graph(t,gr,prio0=0,negkeys=None):
        buf=t&1; pb=vP[buf]
        for e in range(32):
            qb,r=divmod(e,8); T=vr(vT[e%NT]); Tp=vr(vT[(e-1)%NT]); p=prio0+4*e
            war=[('C',(e-NT)|1)] if e>=NT else []
            if negkeys: war=war+[negkeys[qb]]+(negkeys if e<NT else [])
            gr.add(('F',e),I(f'v_fma_f32 {T}, {vr(sreg(buf,qb,r))}, {sr(sC)}, {vr(vNEG[qb])}'),war,prio=p)
            gr.add(('X',e),I(f'v_exp_f32 {T}, {T}'),[('F',e)],prio=p+1)
            if r&1:
                gr.add(('C',e),I(f'v_cvt_pk_bf16_f32 {vr(pb+4*qb+(r>>1))}, {Tp}, {T}'),late=[('X',e),('X',e-1)],prio=p+2)
                if t>0 and 'nochk' not in ABL:
                    j=e>>1; m=vr(vTM[0])
                    if j==2: gr.add(('O',j),I(f'v_or3_b32 {m}, {vr(pb)}, {vr(pb+1)}, {vr(pb+2)}'),[('C',1),('C',3),('C',5)],prio=p+3)
                    elif j>2 and j%2==0: gr.add(('O',j),I(f'v_or3_b32 {m}, {m}, {vr(pb+j-1)}, {vr(pb+j)}'),[('O',j-2),('C',e-2),('C',e)],prio=p+3)
                    elif j==15: gr.add(('O',j),I(f'v_or_b32 {m}, {m}, {vr(pb+15)}'),[('O',14),('C',e)],prio=p+3)
        if t>0 and 'nochk' not in ABL:
            m=vr(vTM[0])
            gr.add(('and',),I(f'v_and_b32 {m}, {sr(sTHR)}, {m}'),[('O',15)],prio=prio0+200)
            gr.add(('cmp',),I(f'v_cmp_ne_u32 vcc, 0, {m}'),[('and',)],prio=prio0+201)
    tramp=[]; nleft=[]
    for t in range(0,16):
        gr=Ops()
        if t==0:
            for qb in range(4):
                regs=[sreg(0,qb,r) for r in range(8)]
                tr=max_tree(vNEG[qb],regs)
                for i,x in enumerate(tr): gr.add(('mx',qb,i),x,deps=[('mx',qb,i-1)] if i else [],prio=4*i+qb)
            fin,p=xlane_graph(gr,'xm','v_max_f32',vNEG,vT[:4],[('mx',qb,3) for qb in range(4)],16)
            for qb in range(4):
                gr.add(('ng1',qb),I(f'v_mul_f32 {vr(vNEG[qb])}, {sr(sNC)}, {vr(vNEG[qb])}'),[fin[qb]],prio=p+qb)
                gr.add(('ng2',qb),I(f'v_add_f32 {vr(vNEG[qb])}, {sr(sBIAS)}, {vr(vNEG[qb])}'),[('ng1',qb)],prio=p+4+qb)
            if 'nosm' not in ABL: sm_graph(0,gr,p+8,[('ng2',qb) for qb in range(4)])
            gaps=[gA(0,i) for i in range(a.w0a,PH)]
        else:
            if 'nosm' not in ABL: sm_graph(t,gr)
            if t<15: gaps=[gB(t-1,i) for i in range(W0,PB)]+[gA(t,i) for i in range(0,PH-1)]
            else: gaps=[gB(14,i) for i in range(W0,PB-1)]
        left=schedule(G,gr,gaps,pace=(4.0 if t in(0,15) else None))
        nleft.append(len(left))
        gl=gA(t,PH-1) if t<15 else gB(14,PB-1)
        G[gl].tail+=left
        if t>0 and 'nochk' not in ABL:
            G[gl].tail+=[I(f's_cbranch_vccnz L_tr{t}'),I(f'L_bk{t}:')]; tramp.append(t)
    print('softmax ops left over per tile:',nleft,file=sys.stderr)
    qa=q_addr(False); qr=q_reads()
    G[gq1].sc+=[x for x in qa if x.kind=='salu'][:0]
    g=gq1+1
    while G[g].mem or G[g].sc or G[g].res: g+=1
    G[g].sc+=qa; G[g].res=True
    g+=1; nin=0
    for x in qr[:a.nqin]:
        while g<gB(15,PB-1) and (G[g].res or G[g].mem or free_slots(G[g])<1): g+=1
        if g>=gB(15,PB-1) or G[g].res or G[g].mem: break
        G[g].mem.append(x); nin+=1; g+=a.qsp
    qrest=qr[nin:]
    gr=Ops()
    fin,p=xlane_graph(gr,'xl','v_add_f32',vL,vT[:4],[None]*4,0)
    for o in gr.ops[:4]: o['early']=gB(15,7)
    for qb in range(4): gr.add(('rcp',qb),I(f'v_rcp_f32 {vr(vRI[qb])}, {vr(vL[qb])}'),[fin[qb]],prio=p+qb)
    nl=len(gr.ops)
    def early_of(ci):
        hi,dp=divmod(ci,3)
        return lambda c: gB(15,NRS+4*(4*dp+(c&3))+(2*hi+(c>>2))+4)
    order=[0,3,1,4,2,5]; X=[vS[0],vS[1]]
    for n,ci in enumerate(order):
        conv_graph(gr,ci,X[n&1],CHUNK_PK[ci],early=early_of(ci),prio0=100+80*n)
    for n,ci in enumerate(order):
        for c in range(8):
            for i in range(4):
                o=gr.ops[gr.idx[('R',ci,c,i)]]
                if n>=2: o['deps'].append(('C',order[n-2],c,i>>1))
            if ci==1:
                for i in range(2): gr.ops[gr.idx[('C',ci,c,i)]]['early']=10**9
    lastl=gB(15,a.bq1)
    left=schedule(G,gr,[gB(15,i) for i in range(7,PB)],pace=4.0,window=16)
    inB=[k for k,o in gr.idx.items()]
    print('boundary ops left for the exposed stream:',len(left),'of',len(gr.ops),'; Q reads inside B(15):',nin,file=sys.stderr)
    chk=[g for g in range(gB(15,0),gB(15,PB)) if any(x.mn.startswith('v_permlane') or x.mn=='v_add_f32' or x.mn=='v_mov_b32' for x in G[g].val)]
    assert not any(x.mn.startswith('v_permlane') for x in left) and max(chk)<gq1+1, (max(chk)-gB(15,0),gq1-gB(15,0))
    body=[I('L_item:')]+[I('s_nop 0') for _ in range(a.padnop)]+[need(posK(0),posK(1)),bar()]+lanestamp(0)+pre+[I(f'TOUCH {vr(vF,4)}')]
    for g in range(NG):
        gp=G[g]
        body.append(gp.mfma); body+=gp.sc+gp.mem+gp.val+gp.tail
    extra={}
    def at(i,ins): extra.setdefault(i,[]).extend(ins)
    for i,x in enumerate(qrest): at(2+a.eqsp*i,[x])
    i0=2+a.eqsp*len(qrest)+(a.eqw if qrest else 0)
    at(i0,[I(f's_add_u32 {sr(SRDO)}, {sr(sOP)}, {sr(sHOFF)}'),I(f's_addc_u32 {sr(SRDO+1)}, {sr(sOP+1)}, 0'),I(f's_mov_b32 {sr(SRDO+2)}, {HALFB}'),
           need(lgkm0=True),bar()]+lanestamp(20))
    k=0
    for p in ((42,43) if a.e41b else (41,42,43)):
        for grp_ in dma_groups(p):
            at(i0+a.x41+a.xdsp*k,grp_); k+=1
    pos={id(x):i for i,x in enumerate(left)}
    lastw=-1
    for c in range(8):
        x=gr.ops[gr.idx[('C',0,c,1)]]['ins']; y=gr.ops[gr.idx[('C',0,c,0)]]['ins']
        i=max(pos.get(id(x),-1),pos.get(id(y),-1))+3
        i=max(i,lastw+a.wsp); lastw=i
        at(i,stage_write(c,vP[0]))
    bound=[]
    for i in range(max(len(left),max(extra)+1)):
        bound+=extra.get(i,[])
        if i<len(left): bound.append(left[i])
    return body,bound,tramp

def stage_all(ci,pk):
    o=[]
    for c in range(8): o+=stage_write(c,pk)
    return o
def final_drain():
    o=[]
    R=[vS[0],vS[0]+16,vS[1],vS[1]+16]
    pend=[]
    for n,ci in enumerate((0,1,2,3,4,5)):
        if ci>0: o+=stage_all(ci,CHUNK_PK[ci])
        for (r,cj) in pend:
            for i in range(4): o+=o_store(r+4*i,cj,i)
        r=R[n%4]
        for i in range(4): o.append(I(f'ds_read_b128 {vr(r+4*i,4)}, {vr(vOR)} offset:{i*1024}'))
        pend=[(r,ci)]
    for (r,cj) in pend:
        for i in range(4): o+=o_store(r+4*i,cj,i)
    return o
def rotate():
    o=[]; e=lambda t:o.append(I(t))
    for arr in (sG,sGW):
        e(f's_mov_b32 {sr(sT0)}, {sr(arr[0])}'); e(f's_mov_b32 {sr(arr[0])}, {sr(arr[1])}')
        e(f's_mov_b32 {sr(arr[1])}, {sr(arr[2])}'); e(f's_mov_b32 {sr(arr[2])}, {sr(sT0)}')
    e(f's_add_u32 {sr(sHOFF)}, {sr(sHOFF)}, {ITEMSTEP}')
    e(f's_add_u32 {sr(sITEM)}, {sr(sITEM)}, 1')
    return o

def rare(par):
    o=[]; e=o.append
    pb=vP[par]
    e(f'L_rare{par}:'); e('s_nop 15'); e('s_nop 3')
    m=vTM[0]; t=vTM[1]
    for qb in range(NQ):
        o+=[x.text for x in max_tree(m,[sreg(par,qb,r) for r in range(EPQ)])]
        for sw in (['v_permlane32_swap_b32'] if SH==32 else ['v_permlane16_swap_b32','v_permlane32_swap_b32']):
            e(f'v_mov_b32 {vr(t)}, {vr(m)}'); e('s_nop 1'); e(f'{sw} {vr(t)}, {vr(m)}'); e('s_nop 1'); e(f'v_max_f32 {vr(m)}, {vr(t)}, {vr(m)}')
        if RS:
            e(f'v_mov_b32 {vr(t)}, {sr(sBIAS)}'); e(f'v_fma_f32 {vr(m)}, {sr(sNC)}, {vr(m)}, {vr(t)}')
        else: e(f'v_mul_f32 {vr(m)}, {sr(sNC)}, {vr(m)}')
        e(f'v_min_f32 {vr(m)}, {vr(m)}, {vr(vNEG[qb])}')
        e(f'v_sub_f32 {vr(t)}, {vr(m)}, {vr(vNEG[qb])}')
        e(f'v_exp_f32 {vr(t)}, {vr(t)}'); e(f'v_mov_b32 {vr(vNEG[qb])}, {vr(m)}')
        e(f'v_mul_f32 {vr(vLS[qb])}, {vr(vLS[qb])}, {vr(t)}')
        for i in range(OPQ):
            x=vr(vT[i%4])
            e(f'v_accvgpr_read_b32 {x}, {ar(qb*OPQ+i)}'); e(f'v_mul_f32 {x}, {x}, {vr(t)}'); e(f'v_accvgpr_write_b32 {ar(qb*OPQ+i)}, {x}')
        for r in range(0,EPQ,2):
            x,y=vr(vT[0]),vr(vT[1])
            e(f'v_fma_f32 {x}, {vr(sreg(par,qb,r))}, {sr(sC)}, {vr(vNEG[qb])}'); e(f'v_fma_f32 {y}, {vr(sreg(par,qb,r+1))}, {sr(sC)}, {vr(vNEG[qb])}')
            e(f'v_exp_f32 {x}, {x}'); e(f'v_exp_f32 {y}, {y}'); e('s_nop 0')
            e(f'v_cvt_pk_bf16_f32 {vr(pb+(EPQ//2)*qb+(r>>1))}, {x}, {y}')
            if RS: continue
            if r==0: e(f'v_add_f32 {vr(vTS[qb])}, {x}, {y}')
            else:
                e(f'v_add_f32 {vr(vTS[qb])}, {vr(vTS[qb])}, {x}'); e(f'v_add_f32 {vr(vTS[qb])}, {vr(vTS[qb])}, {y}')
    e('s_nop 3'); e(f's_setpc_b64 {sr(sRET,2)}')
    return o

def stamp(slot):
    o=[]
    if a.stamp!=1: return o
    e=lambda t:o.append(I(t))
    e('s_memtime s[54:55]'); e('s_waitcnt lgkmcnt(0)'); e('s_sub_u32 s54, s54, s52')
    e(f's_lshl_b32 s64, s2, 2'); e(f's_add_u32 s64, s64, {sr(sW)}'); e('s_lshl_b32 s64, s64, 8')
    e(f's_lshl_b32 s65, {sr(sITEM)}, 5'); e('s_add_u32 s64, s64, s65'); e(f's_add_u32 s64, s64, {slot*4}')
    e(f'v_mov_b32 {vr(vTM[0])}, s54'); e(f'v_mov_b32 {vr(vTM[1])}, s64')
    o.append(I(f'buffer_store_dword {vr(vTM[0])}, {vr(vTM[1])}, s[60:63], 0 offen'))
    return o

pro=prologue()
qs0=q_first()
item,bound,tramp=build_item()
rot=rotate()
loopend=[I(f's_cmp_lt_u32 {sr(sITEM)}, 4'),I('s_cbranch_scc1 L_item')]
fin=final_drain()
if a.stamp==4:
    def sv(k): return [I('s_memtime s[54:55]'),I('s_waitcnt lgkmcnt(0)'),I('s_sub_u32 s54, s54, s52'),I(f's_cmp_eq_u32 {sr(sITEM)}, {k[0]}'),I(f's_cselect_b32 s{k[1]}, s54, s{k[1]}')]
    item=item[:3]+sv((0,70))+sv((1,72))+item[3:]+sv((0,71))+sv((1,73))+sv((3,74))
    fin+= [I('s_memtime s[54:55]'),I('s_memrealtime s[58:59]'),I('s_waitcnt lgkmcnt(0)'),I('s_sub_u32 s54, s54, s52'),I('s_sub_u32 s75, s58, s56'),I('s_sub_u32 s76, s56, s98'),
           I('s_waitcnt vmcnt(0)'),I('s_memrealtime s[96:97]'),I('s_waitcnt lgkmcnt(0)'),I('s_sub_u32 s77, s96, s98'),
           I('s_cmp_eq_u32 s2, 101'),I('s_cselect_b32 s64, 32, 0x1000'),I('s_cmp_eq_u32 s2, 0'),I('s_cselect_b32 s64, 0, s64'),I(f's_cmp_eq_u32 {sr(sW)}, 0'),I('s_cselect_b32 s64, s64, 0x1000'),
           I('v_mov_b32 v255, s64')]
    for j,r in enumerate((54,75,76,77,70,71,73,74)):
        fin+=[I(f'v_mov_b32 v254, s{r}'),I(f'buffer_store_dword v254, v255, s[60:63], 0 offen offset:{4*j}')]
elif a.stamp==5:
    base=21*a.ditem
    fin+= [I('v_mbcnt_lo_u32_b32 v254, -1, 0'),I('v_mbcnt_hi_u32_b32 v254, -1, v254'),I(f'v_subrev_u32 v254, {base+a.doff}, v254'),I('v_lshlrev_b32 v254, 2, v254'),
           I(f's_cmp_eq_u32 s2, {a.dwg}'),I('s_cselect_b32 s64, 0, 0x100000'),I(f's_cmp_eq_u32 {sr(sW)}, 0'),I('s_cselect_b32 s64, s64, 0x100000'),
           I('v_add_u32 v254, s64, v254'),I('buffer_store_dword v0, v254, s[60:63], 0 offen')]
elif a.stamp:
    if a.stamp==1:
        item=item[:3]+stamp(0)+item[3:]+stamp(1)
        bound=bound+stamp(2)
    fin+= [I('s_memtime s[54:55]'),I('s_memrealtime s[58:59]'),I('s_waitcnt lgkmcnt(0)'),I('s_sub_u32 s54, s54, s52'),I('s_sub_u32 s58, s58, s56'),
         I('s_lshl_b32 s64, s2, 2'),I(f's_add_u32 s64, s64, {sr(sW)}'),I('s_lshl_b32 s64, s64, 8'),I('s_add_u32 s64, s64, 128'),
         I('v_mov_b32 v252, s54'),I('v_mov_b32 v253, s58'),I('v_mov_b32 v255, s64'),I('buffer_store_dwordx2 v[252:253], v255, s[60:63], 0 offen'),
         I('s_add_u32 s58, s58, s56'),I('v_mov_b32 v248, s98'),I('v_mov_b32 v249, s56'),I('v_mov_b32 v250, s58'),I('s_waitcnt vmcnt(0)'),I('s_memrealtime s[96:97]'),I('s_waitcnt lgkmcnt(0)'),I('v_mov_b32 v251, s96'),
         I('buffer_store_dwordx4 v[248:251], v255, s[60:63], 0 offen offset:16')]
    if a.stamp==3:
        fin+=[I('s_lshl_b32 s64, s2, 2'),I(f's_add_u32 s64, s64, {sr(sW)}'),I('s_lshl_b32 s64, s64, 8'),I('s_add_u32 s64, s64, 0x100000')]
        for k in range(15):
            fin+=[I(f's_sub_u32 s65, s{68+2*k}, s68'),I('v_mov_b32 v250, s65'),I('v_mov_b32 v251, s64'),I(f'buffer_store_dword v250, v251, s[60:63], 0 offen offset:{4*k}')]
    if a.stamp==2:
        fin+=[I('s_lshl_b32 s64, s2, 2'),I(f's_add_u32 s64, s64, {sr(sW)}'),I('s_lshl_b32 s64, s64, 8'),I('s_add_u32 s64, s64, 0x100000'),
              I('v_mbcnt_lo_u32_b32 v254, -1, 0'),I('v_mbcnt_hi_u32_b32 v254, -1, v254'),I('v_lshlrev_b32 v254, 2, v254'),I('v_add_u32 v254, s64, v254'),
              I('buffer_store_dword v0, v254, s[60:63], 0 offen')]
body=item+bound+rot+loopend
def trace():
    for x in pro: yield x,0
    for x in qs0: yield x,0
    for it in range(4):
        for x in body: yield x,40*it
    for x in fin: yield x,160
insert_waits(trace)
nf=check_hazards(trace,verbose=False)
insert_waits(trace)
nf+=check_hazards(trace)
print('nops inserted:',nf,file=sys.stderr)
lines=[]
for x in pro+qs0+body+fin: lines+=materialize(x)
lines.append('L_end:'); lines.append('s_endpgm')
for t in tramp:
    lines+=[f'L_tr{t}:',f's_call_b64 {sr(sRET,2)}, L_rare{t&1}',f's_branch L_bk{t}']
if tramp: lines+=rare(0)+rare(1)
txt='\n'.join(lines)
hdr=open('standalone__gqa_softmax__near_ridge.s.ref').read().split('; Override launch')[0]
hdr+='; Persistent kernel: 256 workgroups x 4 waves; a workgroup owns 256 query rows of a head per item, 4 items each.\n'
if a.final:
    open(a.out,'w').write(asmlib.wrap(NAME,txt,vgpr=512,accum=256,sgpr=102,grid=256,block=256,lds=163840,meta=False,header=hdr))
else:
    asmlib.build(NAME,txt,a.out,vgpr=512,accum=256,sgpr=102,grid=256,block=256,lds=163840)
print('instructions:',sum(1 for l in lines if not l.endswith(':')),file=sys.stderr)
```
